```python
import torch

def _softmax(x, axis=-1):
    return torch.softmax(x, dim=axis)

def _gelu(x):
    return torch.nn.functional.gelu(x, approximate='tanh')

def _silu(x):
    return torch.nn.functional.silu(x)

def _sigmoid(x):
    return torch.sigmoid(x)

def _layernorm(x, axis=-1, eps=1e-05):
    m = x.mean(dim=axis, keepdim=True)
    v = x.var(dim=axis, keepdim=True, unbiased=False)
    return (x - m) / torch.sqrt(v + eps)

def _scatter_add(tgt, idx, src, axis=0):
    return tgt.clone().index_add_(axis, idx, src)

def _segment_sum(src, seg, n):
    out = torch.zeros((n,) + src.shape[1:], dtype=src.dtype)
    return out.index_add_(0, seg, src)

def _pad(x, pw):
    flat = tuple((v for pair in reversed(pw) for v in pair))
    return torch.nn.functional.pad(x, flat)
kernel_name = 'concat_heads__memory_aug_recurrent_mem_tr__linear_kernel_hedgehog__prompt'

def setup_inputs():

    _w = lambda a: (lambda t: t.to(torch.bfloat16) if t.is_floating_point() else t)(torch.as_tensor(a))

    def _A_setup():
        B, S, Dm = (1, 2048, 640)
        H, Dh = (32, 192)
        M, seg = (8, 32)
        seg = min(seg, S)
        S = S // seg * seg
        return {'x': _w((lambda *s: torch.randn(*s, dtype=torch.bfloat16) * 0.05)(B, S, Dm)), 'mem0': _w((lambda *s: torch.randn(*s, dtype=torch.bfloat16) * 1.6)(B, M, Dm)), 'Wq': _w((lambda *s: torch.randn(*s, dtype=torch.bfloat16) * 0.8)(Dm, H, Dh) * Dm ** (-0.5)), 'Wk': _w((lambda *s: torch.randn(*s, dtype=torch.bfloat16) * 0.8)(Dm, H, Dh) * Dm ** (-0.5)), 'Wv': _w((lambda *s: torch.randn(*s, dtype=torch.bfloat16) * 1.6)(Dm, H, Dh) * Dm ** (-0.5)), 'Wo': _w((lambda *s: torch.randn(*s, dtype=torch.bfloat16) * 1.6)(H, Dh, Dm) * (H * Dh) ** (-0.5)), 'seg_len': seg}
    _A_in = _A_setup()

    def _B_setup():
        B, S, D, H = (1, 2048, 640, 32)
        Dh = D // H
        return {'x': _w((lambda *s: torch.randn(*s, dtype=torch.bfloat16) * 0.8)(B, S, D)), 'wqkv': _w((lambda *s: torch.randn(*s, dtype=torch.bfloat16) * 0.8)(D, 3 * D)), 'w_phi': _w((lambda *s: torch.randn(*s, dtype=torch.bfloat16) * 0.8)(H, Dh, Dh) * Dh ** (-0.5)), 'wo': _w((lambda *s: torch.randn(*s, dtype=torch.bfloat16) * 0.05)(D, D))}
    _B_in = _B_setup()
    return {'A_x': _A_in['x'], 'A_mem0': _A_in['mem0'], 'A_Wq': _A_in['Wq'], 'A_Wk': _A_in['Wk'], 'A_Wv': _A_in['Wv'], 'A_Wo': _A_in['Wo'], 'A_seg_len': _A_in['seg_len'], 'B_x': _B_in['x'], 'B_wqkv': _B_in['wqkv'], 'B_w_phi': _B_in['w_phi'], 'B_wo': _B_in['wo']}

def reference(A_x, A_mem0, A_Wq, A_Wk, A_Wv, A_Wo, A_seg_len, B_x, B_wqkv, B_w_phi, B_wo):

    def _A_ref(x, mem0, Wq, Wk, Wv, Wo, seg_len):
        B, S, Dm = x.shape
        H, Dh = (Wq.shape[1], Wq.shape[2])
        M = mem0.shape[1]
        scale = Dh ** (-0.5)
        n_seg = S // seg_len
        L = M + seg_len
        idx = torch.arange(L)
        mask = (idx[:, None] < M) | (idx[:, None] >= idx[None, :])
        mem = mem0
        outs = []
        for s in range(n_seg):
            xs = x[:, s * seg_len:(s + 1) * seg_len, :].clone()
            h = torch.concatenate([mem, xs], axis=1)
            q = torch.einsum('btd,dhe->bhte', h, Wq)
            k = torch.einsum('btd,dhe->bhte', h, Wk)
            v = torch.einsum('btd,dhe->bhte', h, Wv)
            scores = torch.einsum('bhqe,bhke->bhqk', q, k) * scale
            scores = torch.where(mask[None, None], scores, -1000000000.0)
            p = _softmax(scores, axis=-1)
            o = torch.einsum('bhqk,bhke->bhqe', p, v)
            o = torch.einsum('bhte,hed->btd', o, Wo)
            mem = o[:, :M, :].clone()
            outs.append(o[:, M:, :])
        return torch.concatenate(outs, axis=1)

    def _B_ref(x, wqkv, w_phi, wo):
        B, S, D = x.shape
        H = 32
        Dh = D // H
        qkv = (lambda x, *d: x.permute(*d))((x @ wqkv).reshape(B, S, 3, H, Dh), 2, 0, 3, 1, 4)
        q, k, v = (qkv[0], qkv[1], qkv[2])
        pq = torch.einsum('bhsd,hdf->bhsf', q, w_phi)
        pk = torch.einsum('bhsd,hdf->bhsf', k, w_phi)
        phi_q = torch.concatenate([_softmax(pq, axis=-1), _softmax(-pq, axis=-1)], axis=-1)
        phi_k = torch.concatenate([_softmax(pk, axis=-1), _softmax(-pk, axis=-1)], axis=-1)
        kv = torch.einsum('bhsf,bhsd->bhfd', phi_k, v)
        z = torch.einsum('bhsf->bhf', phi_k)
        num = torch.einsum('bhqf,bhfd->bhqd', phi_q, kv)
        den = torch.einsum('bhqf,bhf->bhq', phi_q, z)[..., None] + 1e-06
        o = num / den
        return (lambda x, *d: x.permute(*d))(o, 0, 2, 1, 3).reshape(B, S, D) @ wo
    a = _A_ref(A_x, A_mem0, A_Wq, A_Wk, A_Wv, A_Wo, A_seg_len)
    b = _B_ref(B_x, B_wqkv, B_w_phi, B_wo)
    return torch.concatenate([a, b], axis=-1)
```

```python
import re

def v(i, n=1): return f"v{i}" if n == 1 else f"v[{i}:{i+n-1}]"
def a(i, n=1): return f"a{i}" if n == 1 else f"a[{i}:{i+n-1}]"
def s(i, n=1): return f"s{i}" if n == 1 else f"s[{i}:{i+n-1}]"
def r(i, n=1):
    if i >= 256: return a(i - 256, n)
    assert i + n <= 256
    return v(i, n)

_REG = re.compile(r"^(-|\|)?(abs\()?([vas])(\d+)\)?\|?$")
_RNG = re.compile(r"^(-)?([vas])\[(\d+):(\d+)\]$")

def regs_of(op):
    op = op.strip()
    m = _RNG.match(op)
    if m: return [(m.group(2), i) for i in range(int(m.group(3)), int(m.group(4)) + 1)]
    m = _REG.match(op)
    if m: return [(m.group(3), int(m.group(4)))]
    if op in ("vcc", "vcc_lo", "vcc_hi"): return [("vcc", 0)]
    if op in ("exec", "exec_lo", "exec_hi"): return [("exec", 0)]
    if op == "m0": return [("m0", 0)]
    return []

TRANS = ("v_exp_f32", "v_log_f32", "v_rcp_f32", "v_rsq_f32", "v_sqrt_f32", "v_sin_f32", "v_cos_f32", "v_rcp_iflag_f32")
NODST_S = ("s_cmp", "s_cbranch", "s_waitcnt", "s_barrier", "s_nop", "s_sleep", "s_setprio", "s_branch", "s_endpgm", "s_bitcmp", "s_setreg")

class Ins:
    __slots__ = ("text", "mn", "cls", "dst", "src", "passes", "srcc", "ab", "dpp", "wide", "ws", "target", "lds")
    def __init__(self, text):
        self.text = text
        t = text.split(";")[0].strip()
        parts = t.split(None, 1)
        mn = parts[0]; self.mn = mn
        rest = parts[1] if len(parts) > 1 else ""
        ops = []; cur = ""; depth = 0
        for ch in rest:
            if ch in "[(": depth += 1
            if ch in "])": depth -= 1
            if ch == "," and depth == 0: ops.append(cur.strip()); cur = ""
            else: cur += ch
        if cur.strip(): ops.append(cur.strip())
        mods = ""
        if ops:
            last = ops[-1].split(None, 1)
            ops[-1] = last[0]
            mods = last[1] if len(last) > 1 else ""
        R = [regs_of(o) for o in ops]
        flat = lambda L: [x for l in L for x in l]
        self.dst = []; self.src = []; self.passes = 0; self.srcc = []; self.ab = []
        self.dpp = False; self.wide = []; self.ws = 1; self.target = None; self.lds = False
        if mn.startswith("v_mfma") or mn.startswith("v_smfmac"):
            self.cls = "mfma"
            self.passes = 8 if "32x32" in mn else 4
            self.dst = R[0]
            if mn.startswith("v_smfmac"):
                self.srcc = R[0]; self.ab = R[1] + R[2] + R[3]
            else:
                self.srcc = R[3]; self.ab = R[1] + R[2]
            self.src = self.srcc + self.ab
        elif mn.startswith("v_"):
            self.cls = "valu"
            self.dpp = "_dpp" in mn or "quad_perm" in mods or "row_" in mods
            if mn.startswith("v_cmpx"):
                self.dst = R[0] + [("exec", 0)]; self.src = flat(R[1:])
            elif mn.startswith("v_permlane") and "swap" in mn:
                self.dst = R[0] + R[1]; self.src = R[0] + R[1]
            elif re.match(r"v_(add|sub|subrev|addc|subb)_co", mn):
                self.dst = R[0] + R[1]; self.src = flat(R[2:])
            else:
                self.dst = R[0]; self.src = flat(R[1:])
                if mn.startswith(("v_fmac", "v_pk_fmac", "v_dot2c", "v_writelane")) or self.dpp: self.src = self.src + R[0]
        elif mn.startswith("ds_"):
            self.cls = "ds"
            if mn.startswith(("ds_read", "ds_bpermute", "ds_permute", "ds_swizzle")) or "_rtn" in mn:
                self.dst = R[0]; self.src = flat(R[1:])
            else: self.src = flat(R)
        elif mn.startswith(("buffer_", "global_")):
            self.cls = "vmem"
            islds = " lds" in (" " + mods) or "load_lds" in mn
            if "load" in mn and not islds:
                self.dst = R[0]; self.src = flat(R[1:])
            elif islds:
                self.src = flat(R) + [("m0", 0)]; self.lds = True
            else:
                self.src = flat(R)
                if "atomic" in mn and "sc0" in mods: self.dst = R[0]
                if "store" in mn and ("x4" in mn or "x3" in mn):
                    self.wide = R[0] if mn.startswith("buffer_") else R[1]
        elif mn.startswith("s_"):
            self.cls = "salu"
            if mn == "s_nop": self.ws = int(ops[0], 0) + 1
            if mn.startswith(("s_cbranch", "s_branch")): self.target = ops[0]
            if mn.startswith(NODST_S): self.src = flat(R)
            else:
                self.dst = R[0]; self.src = flat(R[1:])
                if "saveexec" in mn: self.dst = self.dst + [("exec", 0)]
        else:
            raise ValueError("unknown instr: " + text)

def need(p, c):
    n = 0
    pd = set(p.dst)
    if p.cls == "valu":
        vd = {x for x in pd if x[0] in "va"}
        sd = {x for x in pd if x[0] in ("s", "vcc")}
        if c.cls == "mfma" and vd & set(c.src): n = max(n, 2)
        if c.cls == "valu":
            if c.dpp and vd & set(c.src): n = max(n, 2)
            if c.mn.startswith("v_permlane") and vd & set(c.src): n = max(n, 2)
            if c.mn.startswith(("v_readfirstlane", "v_readlane")) and vd & set(c.src): n = max(n, 1)
            if p.mn.startswith(TRANS) and vd & set(c.src): n = max(n, 1)
            if sd & set(c.src): n = max(n, 4 if c.mn.startswith(("v_readlane", "v_writelane")) else 2)
        if c.cls == "vmem" and sd & set(c.src): n = max(n, 5)
        if c.cls == "salu" and sd & set(c.src): n = max(n, 1)
        if ("exec", 0) in pd:
            if c.cls == "mfma": n = max(n, 4)
            if c.cls == "valu" and c.dpp: n = max(n, 5)
            if c.cls == "valu" and c.mn.startswith(("v_permlane", "v_read", "v_writelane")): n = max(n, 4)
    if p.cls == "mfma":
        big = {4: 8, 8: 12}[p.passes]
        if c.cls == "mfma":
            if pd & set(c.ab): n = max(n, big)
            if pd & set(c.srcc):
                if not (p.dst == c.srcc and p.passes == c.passes): n = max(n, big - 2)
            elif pd & set(c.dst) and p.dst != c.dst: n = max(n, big)
            elif pd & set(c.dst) and p.passes != c.passes: n = max(n, big)
        else:
            if pd & (set(c.src) | set(c.dst)): n = max(n, big)
            if c.cls == "valu" and set(p.srcc) & set(c.dst): n = max(n, p.passes - 1)
    if p.cls == "vmem" and p.wide:
        if set(p.wide) & set(c.dst): n = max(n, 2)
    if p.cls == "salu" and ("m0", 0) in pd and c.cls == "vmem" and c.lds: n = max(n, 1)
    return n

class K:
    def __init__(self):
        self.items = []
        self.uid = 0
    def __call__(self, text):
        for line in text.strip().split("\n"):
            line = line.strip()
            if not line: continue
            if line.startswith(";"): self.items.append(("t", "    " + line))
            elif line.endswith(":"): self.items.append(("l", line[:-1]))
            elif line.startswith("."): self.items.append(("t", line))
            else: self.items.append(("i", Ins(line)))
    def label(self, name): self.items.append(("l", name))
    def raw(self, t): self.items.append(("t", t))
    def new(self, base="L"):
        self.uid += 1
        return f"{base}_{self.uid}"
    def fix(self):
        WIN = 14
        out = []; hist = []
        def req(hist, c):
            d = 0; n = 0
            for p in reversed(hist):
                n = max(n, need(p, c) - d)
                d += p.ws
                if d >= WIN: break
            return n
        nins = 0
        for it in self.items:
            if it[0] == "i":
                c = it[1]
                n = req(hist, c)
                if n > 0:
                    nop = Ins(f"s_nop {n-1}"); out.append(("i", nop)); hist.append(nop); nins += 1
                out.append(it); hist.append(c)
                if c.mn in ("s_branch", "s_endpgm"): hist = []
                hist = hist[-WIN:]
            else: out.append(it)
        changed = True
        while changed:
            changed = False
            pos = {it[1]: i for i, it in enumerate(out) if it[0] == "l"}
            for i, it in enumerate(out):
                if it[0] != "i" or it[1].target is None: continue
                h = []
                j = i
                while j >= 0 and len(h) < WIN:
                    if out[j][0] == "i":
                        if j != i and out[j][1].mn in ("s_branch", "s_endpgm"): break
                        h.insert(0, out[j][1])
                    j -= 1
                nb = len(h)
                j = pos[it[1].target]; d = 0; worst = 0
                hh = list(h)
                while j < len(out) and d < WIN:
                    if out[j][0] == "i":
                        c = out[j][1]
                        worst = max(worst, req(hh, c))
                        hh.append(c); d += c.ws
                        if c.mn in ("s_branch", "s_endpgm"): break
                    j += 1
                if worst > 0:
                    out.insert(i, ("i", Ins(f"s_nop {worst-1}"))); nins += 1
                    changed = True
                    break
        self.items = out
        return nins
    def text(self):
        L = []
        for k, x in self.items:
            if k == "i": L.append("    " + x.text)
            elif k == "l": L.append(x + ":")
            else: L.append(x)
        return "\n".join(L) + "\n"
```

```python
import sys, math
from asmlib import *
NAME='concat_heads__memory_aug_recurrent_mem_tr__linear_kernel_hedgehog__prompt'

EX   = 0x0
FLG  = 0x400000
FP   = FLG
FV   = FLG + 0x3000
FX   = FLG + 0x7000
FB   = FLG + 0x9000
FXD  = FLG + 0x10000
UR   = 0x600000
HN   = UR + 0x1E0000
QKV  = 0x800000
QKV_S= 3*32*12288
VP   = QKV + 64*QKV_S
VP_S = 40*40960
PX   = VP + 64*VP_S
PX_S = 32*2560
BWS  = PX + 64*PX_S
KVP  = BWS
OB   = BWS + 64*4*6144
LOG  = 0xF000000
assert BWS < 0xD000000
WS,DBG,I0,I1,I2,OUT = 8,12,16,20,24,28
sW,sBUD,sS,sID,sPOL0,sPOL1,sEX,sPOL2 = 32,33,34,52,53,54,55,56
LEAD=2
CEXP = (192**-0.5)*math.log2(math.e)
import struct
def f2u(f): return struct.unpack('<I',struct.pack('<f',f))[0]
def srd(n): return s(n,4)

class LQ:
    def __init__(q,k,name,mx): q.k=k; q.n=0; q.tags={}; q.name=name; q.mx=mx; q.done=0
    def op(q,text,tag=None):
        q.k(text); q.n+=1
        if tag is not None: q.tags[tag]=q.n
    def wait(q,tag):
        t=q.tags[tag]
        if t<=q.done: return
        c=min(q.n-t,q.mx); q.k(f"s_waitcnt {q.name}({c})"); q.done=q.n-c
    def drain(q):
        q.k(f"s_waitcnt {q.name}(0)"); q.done=q.n

class G:
    def __init__(g, roles="PAUWROB", log=False, nseg=64, probe=True, wonly=False, ast=None, hint=False, HA=51, HU=20, slp=1, NH=5, uh=True, nlA=12, nlR=8, HR=0):
        g.k=K(); g.roles=roles; g.log=log; g.nseg=nseg; g.probe=probe; g.wonly=wonly; g.ast=ast; g.hint=hint; g.HA=HA; g.HU=HU; g.slp=slp; g.uh=uh; g.nlA=nlA; g.nlR=nlR; g.HR=HR; g.NH=NH; g.mute=False
    def mk_srd(g, dst, ptr, nbytes):
        g.k(f"""s_mov_b32 s{dst}, s{ptr}
        s_mov_b32 s{dst+1}, s{ptr+1}
        s_mov_b32 s{dst+2}, {nbytes}
        s_mov_b32 s{dst+3}, 0x20000""")
    def stamp(g, i, lane=None, cyc=False):
        if not g.log or (g.mute and i in (1,2,3,4)): return
        ln = f"s{sS}" if lane is None else str(lane)
        g.k(f"""{"s_memtime" if (cyc or (g.log==2 and i!=5)) else "s_memrealtime"} s[{64+2*i}:{65+2*i}]""")
        if lane is not None: g.flush([i],lane)
    def flush(g, idx, lane=None):
        if not g.log: return
        ln = f"s{sS}" if lane is None else str(lane)
        g.k(f"s_mov_b32 s62, m0\ns_mov_b32 m0, {ln}\ns_waitcnt lgkmcnt(0)")
        for i in idx: g.k(f"v_writelane_b32 v{g.LG[i]}, s{64+2*i}, m0")
        g.k("s_mov_b32 m0, s62")
    def loginit(g, LG):
        g.LG=LG
        if not g.log: return
        for i in range(len(LG)): g.k(f"v_mov_b32 v{LG[i]}, 0\ns_mov_b32 s{64+2*i}, 0")
        g.k(f"s_waitcnt lgkmcnt(0)\nv_writelane_b32 v{LG[5]}, s80, 0")
        g.stamp(5,1)
        if g.wonly: g.logdump(4); g.k('s_endpgm')
    def logdump(g, tmp):
        if not g.log: return
        g.stamp(5,2)
        g.k(f"""s_mov_b64 exec, -1
        s_lshl_b32 s60, s{sID}, 2
        s_add_u32 s60, s60, s{sW}
        s_lshl_b32 s60, s60, 11
        s_add_u32 s60, s60, {LOG}
        v_lshlrev_b32 v{tmp}, 5, v2""")
        for i,rg in enumerate(g.LG): g.k(f"buffer_store_dword v{rg}, v{tmp}, {srd(WS)}, s60 offen offset:{4*i}")
    def budget(g): g.k(f"s_sub_u32 s{sBUD}, s{sBUD}, 1\ns_cbranch_scc1 EXIT")
    def wait_start(g, t0, t1, pol=True):
        k=g.k; l=k.new("WST")
        k(f"v_mov_b32 v{t1}, 0")
        k.label(l)
        k(f"buffer_load_dwordx4 {v(t0,4)}, v{t1}, {srd(DBG)}, 0 offen sc1")
        g.budget()
        k(f"""s_waitcnt vmcnt(0)
        v_readfirstlane_b32 s4, v{t0}
        v_readfirstlane_b32 s5, v{t0+1}
        v_readfirstlane_b32 s6, v{t0+2}
        v_readfirstlane_b32 s7, v{t0+3}
        s_sleep 2
        s_cmp_lg_u32 s4, 40
        s_cbranch_scc1 {l}""")
        if pol:
            k(f"""s_and_b32 s4, s5, s6
            s_and_b32 s4, s4, s7
            s_bitcmp1_b32 s4, 1
            s_cbranch_scc0 {l}
            s_and_b32 s{sPOL0}, s5, 1
            s_lshl_b32 s{sPOL0}, s{sPOL0}, 13
            s_and_b32 s{sPOL1}, s6, 1
            s_lshl_b32 s{sPOL1}, s{sPOL1}, 13
            s_and_b32 s{sPOL2}, s7, 1
            s_lshl_b32 s{sPOL2}, s{sPOL2}, 13""")
    def exslot(g, dst, sreg, add=0):
        g.k(f"""s_add_u32 s{dst}, s{sreg}, {add}
        s_cmp_lt_u32 s{dst}, 32
        s_cselect_b32 s4, s{sPOL0}, s{sPOL1}
        s_lshl_b32 s{dst}, s{dst}, 16
        s_add_u32 s{dst}, s{dst}, s4""")
    def flag_wait(g, vaddr, sprog, sneed, tmp, fail=None, slp=4):
        k=g.k; l=k.new("FW"); d=k.new("FWD")
        k(f"s_cmp_ge_u32 s{sprog}, s{sneed}\ns_cbranch_scc1 {d}")
        if not fail:
            k(f"s_branch {l}_go"); k.label(l); k(f"s_sleep {slp}"); g.budget(); k.label(l+"_go")
        k(f"""buffer_load_dword v{tmp}, v{vaddr}, {srd(WS)}, 0 offen sc1
        s_waitcnt vmcnt(0)
        v_cmp_gt_u32 vcc, s{sneed}, v{tmp}
        s_cbranch_vccnz {fail or l}
        s_mov_b32 s{sprog}, s{sneed}""")
        for inc in (1,3,8,20):
            k(f"""s_add_u32 s4, s{sneed}, {inc}
            v_cmp_gt_u32 vcc, s4, v{tmp}
            s_cbranch_vccnz {d}
            s_mov_b32 s{sprog}, s4""")
        k.label(d)
    def hint_wait(g, vaddr, sneed, tmps, nl):
        if not g.hint: return
        k=g.k; l=k.new("HW"); N=len(tmps)
        ld=lambda t: k(f"buffer_load_dword v{t}, v{vaddr}, {srd(WS)}, s{sPOL2} offen sc1")
        k(f"s_mov_b64 exec, {(1<<nl)-1}")
        for t in tmps[:-1]: ld(t); k(f"s_sleep {g.slp}" if g.slp else "s_nop 7")
        k.label(l)
        for i in range(N):
            ld(tmps[(i-1)%N])
            if i==0: g.budget()
            k(f"s_waitcnt vmcnt({N-1})\nv_cmp_gt_u32 vcc, s{sneed}, v{tmps[i]}\ns_cbranch_vccz {l}_ok")
            if g.slp: k(f"s_sleep {g.slp}")
        k(f"s_branch {l}")
        k.label(l+"_ok")
        k("s_mov_b64 exec, -1")
    def flag_set(g, sval, soff, t0, vzero):
        g.k(f"""v_mov_b32 v{t0}, s{sval}
        s_mov_b64 exec, 1
        buffer_store_dword v{t0}, v{vzero}, {srd(WS)}, s{soff} offen sc1
        s_mov_b64 exec, -1""")
    def poll(g, loads, soff, vmax, after_first=None):
        k=g.k; l=k.new("PL")
        k.label(l)
        for (rg,n,va,imm) in loads:
            k(f"buffer_load_dwordx{n} {r(rg,n)}, v{va}, {srd(WS)}, s{soff} offen offset:{imm} sc1")
        g.budget()
        first=True; N=len(loads); pend=[]
        for i,(rg,n,va,imm) in enumerate(loads):
            k(f"s_waitcnt vmcnt({N-1-i})")
            pend+=[rg+j for j in range(n)]
            while len(pend)>=(3 if first else 2):
                if first: k(f"v_max3_u32 v{vmax}, v{pend[0]}, v{pend[1]}, v{pend[2]}"); pend=pend[3:]; first=False
                else: k(f"v_max3_u32 v{vmax}, v{vmax}, v{pend[0]}, v{pend[1]}"); pend=pend[2:]
        for p in pend: k(f"v_max_u32 v{vmax}, v{vmax}, v{p}")
        k(f"v_cmp_eq_u32 vcc, -1, v{vmax}\ns_cbranch_vccnz {l}")
    def w96_setup(g, scol, perm):
        k=g.k
        k(f"s_mul_i32 s39, s{sW}, 36864\ns_movk_i32 s46, 171")
        for i in range(3):
            k(f"""v_add_u32 v10, {64*i}, v2
            v_mul_lo_u32 v11, v10, s46
            v_lshrrev_b32 v11, 10, v11
            v_mul_u32_u24 v12, 6, v11
            v_sub_u32 v12, v10, v12
            v_mul_u32_u24 v11, 12288, v11
            v_lshl_add_u32 v11, v12, 4, v11
            v_add_u32 v{6+i}, s{scol}, v11""")
        if perm:
            k("""v_lshrrev_b32 v10, 5, v2
            v_lshlrev_b32 v10, 4, v10
            v_bfe_u32 v11, v2, 4, 1
            v_lshl_add_u32 v10, v11, 2, v10
            v_bfe_u32 v11, v2, 3, 1
            v_lshl_add_u32 v10, v11, 3, v10
            v_bfe_u32 v11, v2, 2, 1
            v_add_u32 v10, v10, v11""")
        else:
            k("""v_lshrrev_b32 v10, 4, v2
            v_lshlrev_b32 v10, 3, v10
            v_bfe_u32 v11, v2, 2, 2
            v_add_u32 v10, v10, v11""")
        k("""v_mul_u32_u24 v10, 96, v10
        v_and_b32 v11, 3, v2
        v_lshl_add_u32 v10, v11, 3, v10
        v_add_u32 v9, s39, v10""")
    def w96_load(g, blocks, perm, srot=None):
        k=g.k; NB=len(blocks); RING=6
        def issue(b):
            sr,kk,_=blocks[b]
            if srot is None: k(f"s_mov_b32 s46, {kk*64*12288}")
            else:
                k(f"""s_add_u32 s46, s{srot}, {kk}
                s_cmp_ge_u32 s46, 10
                s_cselect_b32 s47, 10, 0
                s_sub_u32 s46, s46, s47
                s_mul_i32 s46, s46, {64*12288}""")
            k(f"s_add_u32 s47, s46, {32*12288}")
            for i in range(6):
                k(f"s_add_u32 m0, s39, {(b%RING)*6144+i*1024}")
                k(f"buffer_load_dwordx4 v{6+i%3}, {srd(sr)}, s{46+i//3} offen lds")
        for b in range(min(RING,NB)): issue(b)
        for b in range(NB):
            k(f"s_waitcnt vmcnt({6*(min(b+RING-1,NB-1)-b)})")
            for t in range(3):
                for u in range(4):
                    row = 32*(u>>1) + (2*(u&1) if perm else 4*(u&1))
                    k(f"ds_read_b64_tr_b16 {r(blocks[b][2][t]+2*u,2)}, v9 offset:{(b%RING)*6144+row*96+t*32}")
            k("s_waitcnt lgkmcnt(0)")
            if b+RING<NB: issue(b+RING)
    def role_P(g):
        k=g.k
        k.label("ROLE_P")
        k(f"""s_lshr_b32 s3, s2, 5
        s_load_dwordx2 s[4:5], s[0:1], 0
        s_load_dwordx4 s[40:43], s[0:1], 16
        s_load_dwordx2 s[44:45], s[0:1], 32
        s_and_b32 s36, s2, 31
        s_mul_i32 s37, s36, 384
        s_mul_i32 s36, s{sW}, 96
        s_add_u32 s37, s37, s36
        s_waitcnt lgkmcnt(0)
        s_cmp_eq_u32 s3, 1
        s_cselect_b32 s40, s42, s40
        s_cselect_b32 s41, s43, s41
        s_cmp_eq_u32 s3, 2
        s_cselect_b32 s40, s44, s40
        s_cselect_b32 s41, s45, s41""")
        g.mk_srd(I0,4,2048*1280); g.mk_srd(I1,40,640*12288)
        WB=256
        unit=lambda kk,t: WB+(kk*3+t)*8
        g.w96_setup(37,False)
        g.w96_load([(I1,kk,[unit(kk,t) for t in range(3)]) for kk in range(10)],False)
        g.loginit([152,153,154,155,156,157])
        k("s_barrier")
        k(f"""s_lshl_b32 s46, s{sW}, 3
        v_lshrrev_b32 v6, 3, v2
        v_add_u32 v6, s46, v6
        v_bfe_u32 v7, v6, 1, 3
        v_and_b32 v9, 7, v2
        v_xor_b32 v7, v7, v9
        v_mul_u32_u24 v6, 1280, v6
        v_lshl_add_u32 v6, v7, 4, v6
        s_lshl_b32 s39, s{sW}, 10
        v_and_b32 v8, 15, v2
        v_bfe_u32 v9, v2, 1, 3
        v_lshrrev_b32 v7, 4, v2
        v_xor_b32 v14, v7, v9
        v_lshlrev_b32 v14, 4, v14
        v_lshl_add_u32 v10, v8, 7, v14
        v_xor_b32 v11, 64, v10
        v_lshlrev_b32 v15, 4, v2
        v_mov_b32 v5, 0
        s_mul_i32 s47, s2, 12288
        s_mul_i32 s46, s{sW}, 3072
        s_add_u32 s47, s47, s46
        s_add_u32 s47, s47, {QKV}
        s_lshl_b32 s38, s2, 7
        s_add_u32 s38, s38, {FP}
        s_mov_b32 s48, 0
        s_mov_b32 s49, s39
        s_mov_b32 s50, 0
        s_mov_b32 s{sS}, 0""")
        def dma(kb):
            k(f"""s_add_u32 m0, s49, {kb*4096}
            s_add_u32 s46, s48, {kb*128}
            buffer_load_dwordx4 v6, {srd(I0)}, s46 offen lds""")
        def dma_adv():
            k(f"""s_add_u32 s48, s48, 40960
            s_min_u32 s48, s48, {63*40960}
            s_add_u32 s49, s49, 40960
            s_cmp_ge_u32 s49, {4*40960}
            s_cselect_b32 s49, s39, s49""")
        for rep in range(2):
            for kb in range(10): dma(kb)
            dma_adv()
        g.wait_start(16,20,pol=False)
        k("s_barrier")
        XF=32; NB=3; ACC=[64,88]; PK=112
        def rd(ks,lq):
            for tt in range(2):
                lq.op(f"ds_read_b128 {v(XF+8*(ks%NB)+4*tt,4)}, v{10+(ks&1)} offset:{((ks%20)>>1)*4096+tt*2048}",(ks,tt))
        def adv_rd():
            k(f"""s_add_u32 s50, s50, 1
            s_and_b32 s50, s50, 3
            s_mov_b32 s46, 40960
            s_cselect_b32 s46, s46, {(-3*40960)&0xffffffff}
            v_add_u32 v10, s46, v10
            v_add_u32 v11, s46, v11""")
        def epi(A,t):
            for tt in range(2):
                for j in range(2):
                    k(f"v_cvt_pk_bf16_f32 v{PK+2*tt+j}, v{A+(t*2+tt)*4+2*j}, v{A+(t*2+tt)*4+2*j+1}")
            k(f"v_permlane16_swap_b32 v{PK}, v{PK+2}\nv_permlane16_swap_b32 v{PK+1}, v{PK+3}")
            k(f"buffer_store_dwordx4 {v(PK,4)}, v15, {srd(WS)}, s47 offen offset:{t*1024} sc1")
        NB=4; ACC=[64,88]
        lq=LQ(k,"lgkmcnt",15)
        rd(0,lq); rd(1,lq)
        k.label("P_LOOP")
        for half in range(2):
            A=ACC[half]; Aprev=ACC[1-half]
            if half==0:
                lq=LQ(k,"lgkmcnt",15); lq.n=4; lq.tags={(0,0):1,(0,1):2,(1,0):3,(1,1):4}
            base=20*half
            g.stamp(0)
            for ks in range(20):
                if ks==18: adv_rd()
                if ks==5: g.stamp(1)
                if ks==15: g.stamp(2)
                rd(base+ks+2,lq)
                lq.wait((base+ks,1))
                for t in range(3):
                    for tt in range(2):
                        c = "0" if ks==0 else v(A+(t*2+tt)*4,4)
                        k(f"v_mfma_f32_16x16x32_bf16 {v(A+(t*2+tt)*4,4)}, {r(unit(ks>>1,t)+4*(ks&1),4)}, {v(XF+8*((base+ks)%NB)+4*tt,4)}, {c}")
                    if t==0 and 2<=ks<=4:
                        if half==0:
                            l=k.new("PSK"); k(f"s_cmp_eq_u32 s{sS}, 0\ns_cbranch_scc1 {l}"); epi(Aprev,ks-2); k.label(l)
                        else: epi(Aprev,ks-2)
                    if t==0 and 5<=ks<=14: dma(ks-5)
                    if t==0 and ks==15:
                        dma_adv()
                        if half==0:
                            k(f"s_cmp_eq_u32 s{sS}, 0\ns_cselect_b32 s46, 0, {QKV_S}\ns_add_u32 s47, s47, s46")
                        else: k(f"s_add_u32 s47, s47, {QKV_S}")
                    if t==1 and ks==17:
                        l=k.new("PF")
                        g.stamp(3)
                        k("s_waitcnt vmcnt(10)")
                        g.stamp(4)
                        k(f"s_barrier\ns_cmp_lg_u32 s{sW}, 0\ns_cbranch_scc1 {l}")
                        g.flag_set(sS,38,4,5)
                        k.label(l)
            g.flush([0,1,2,3,4])
            k(f"s_add_u32 s{sS}, s{sS}, 1")
        k(f"s_cmp_lt_u32 s{sS}, {g.nseg}\ns_cbranch_scc1 P_LOOP")
        for t in range(3): epi(ACC[1],t)
        k(f"s_waitcnt vmcnt(0)\ns_barrier\ns_movk_i32 s46, 128")
        g.flag_set(46,38,4,5)
        if "B" in g.roles:
            k("s_cmp_lt_u32 s2, 64\ns_cbranch_scc1 ROLE_B")
        g.logdump(6)
        k("s_endpgm")
    def au_common(g):
        k=g.k
        k(f"""s_lshl_b32 s35, s{sW}, 1
        s_add_u32 s35, s35, 1
        s_cmp_eq_u32 s{sW}, 0
        s_cselect_b32 s35, 0, s35""")
    def au_addrs(g, sparseT=False):
        k=g.k
        MS=147456
        k("s_movk_i32 s46, 205\ns_lshl_b32 s47, s35, 2")
        for j in range(3):
            k(f"""v_lshrrev_b32 v10, 4, v2
            v_add3_u32 v10, v10, s47, {4*j}
            v_mul_lo_u32 v11, v10, s46
            v_lshrrev_b32 v11, 11, v11
            v_mul_u32_u24 v11, {16384-2560}, v11
            v_lshl_add_u32 v11, v10, 8, v11
            v_and_b32 v10, 15, v2
            v_lshl_add_u32 v11, v10, 4, v11
            v_add_u32 v{12+j}, 5120, v11""")
        k(f"""v_lshlrev_b32 v16, 4, v2
        v_add_u32 v16, {MS}, v16
        s_lshl_b32 s47, s35, 10
        v_add_u32 v15, s47, v16
        v_mov_b32 v17, 0x4444
        v_mov_b32 v10, 0xeeee
        v_and_b32 v11, 1, v2
        v_cmp_ne_u32 vcc, 0, v11
        v_cndmask_b32 v17, v17, v10, vcc""")
        for sl in range(3,10):
            k(f"""s_add_u32 s46, s35, {sl}
            s_cmp_ge_u32 s46, 10
            s_cselect_b32 s47, 10, 0
            s_sub_u32 s46, s46, s47
            s_lshl_b32 s46, s46, 10
            v_add_u32 v{18+sl-3}, s46, v16""")
        k(f"""s_lshl_b32 s47, s35, 2
        s_and_b32 s46, s2, {7 if g.nlA<=4 else 0}
        s_add_u32 s47, s47, s46
        v_add_u32 v10, s47, v2
        v_lshlrev_b32 v10, 7, v10
        v_add_u32 v16, {HN+16384}, v10""")
        k(f"""v_lshlrev_b32 v25, 4, v2
        v_add_u32 v25, s39, v25""")
        if sparseT:
            k(f"""s_mul_i32 s46, s{sW}, {48*16}
            v_bfe_u32 v10, v2, 2, 2
            v_lshlrev_b32 v10, 6, v10
            v_and_b32 v11, 1, v2
            v_lshl_add_u32 v10, v11, 5, v10
            v_and_b32 v11, 2, v2
            v_add_u32 v10, v10, v11
            v_lshrrev_b32 v11, 4, v2
            v_lshl_add_u32 v10, v11, 3, v10
            v_add_u32 v10, s46, v10
            v_add_u32 v26, {MS+10240}, v10""")
        else:
            k(f"""s_mul_i32 s46, s{sW}, {48*16}
            v_and_b32 v10, 15, v2
            v_lshlrev_b32 v10, 4, v10
            v_lshrrev_b32 v11, 4, v2
            v_lshl_add_u32 v10, v11, 2, v10
            v_add_u32 v10, s46, v10
            v_add_u32 v26, {MS+10240}, v10""")
    def spill(g, TMP, n):
        k=g.k
        k("s_barrier")
        for i in range(n):
            k(f"ds_write_b128 v25, {v(TMP+8*i,4)} offset:{i*2048}\nds_write_b128 v25, {v(TMP+8*i+4,4)} offset:{i*2048+1024}")
            if i%4==3: k("s_waitcnt lgkmcnt(0)")
        k("s_waitcnt lgkmcnt(0)")
    def comb(g, D): return [f"v_add_f32 v{D}, v{D}, v{D+1}", f"v_add_f32 v{D+2}, v{D+2}, v{D+3}", f"v_cvt_pk_bf16_f32 v{D+1}, v{D}, v{D+2}"]
    def twrite(g, D, off, sparseT):
        if sparseT: return [f"ds_write_b16 v26, v{D+1} offset:{off}", f"ds_write_b16_d16_hi v26, v{D+1} offset:{off+4}"]
        return [f"ds_write_b32 v26, v{D+1} offset:{off}"]
    def stream(g, mf, ds, valu, misc, lq, lo=0, hi=None):
        k=g.k; seq=[0]
        q=[]
        def add(e,p,t,tag): seq[0]+=1; q.append((e,p,seq[0],t,tag))
        for d in ds: add(*d)
        def force(tag):
            while tag not in lq.tags:
                c=sorted(q,key=lambda x:(x[4]!=tag,x[1],x[2]))
                x=[y for y in q if y[4]==tag][0]
                pre=[y for y in q if y[4] is None and y[2]==x[2]-1]
                for y in pre+[x]: q.remove(y); lq.op(y[3],y[4])
        for pos,(text,waits,rel) in enumerate(mf):
            if pos<lo or (hi is not None and pos>=hi): continue
            if pos==0:
                for w in waits: lq.wait(w)
            if g.mute and pos in g.ast:
                g.mute=False; g.stamp(1+g.ast.index(pos)); g.mute=True
            k(text)
            for d in rel: add(pos,*d)
            if pos in misc: misc[pos]()
            c=sorted([x for x in q if x[0]<=pos],key=lambda x:(x[1],x[2]))
            if c: q.remove(c[0]); lq.op(c[0][3],c[0][4])
            if pos+1<len(mf):
                for w in mf[pos+1][1]: force(w); lq.wait(w)
            if pos in valu: k(valu[pos])
        return sorted(q,key=lambda x:(x[1],x[2]))
    def proj_stream(g, order, ldsu, regu, MF, ACC, STG, NST, lq, bpos, done, sparseT, ds, valu, misc, split=False):
        k=g.k; nl=len(ldsu); mf=[]
        for (t,sl) in order:
            w=[('m',sl)] if sl>=3 else []
            rel=[]
            if (t,sl) in ldsu:
                i=ldsu[(t,sl)]; w.append(('w',i)); B=STG+8*(i%NST)
                if i+NST<nl:
                    j=i+NST
                    rel=[(5,f"ds_read_b128 {v(B,4)}, v25 offset:{j*2048}",None),(5,f"ds_read_b128 {v(B+4,4)}, v25 offset:{j*2048+1024}",('w',j))]
            else: B=regu[(t,sl)]
            mf.append((f"v_smfmac_f32_16x16x64_bf16 {v(ACC+4*t,4)}, {v(MF+4*sl,4)}, {r(B,8)}, v17",w,rel))
        for j in range(3): ds.append((0,0,f"ds_write_b128 v15, {v(MF+4*j,4)} offset:{j*1024}",('own',j)))
        def h(): lq.wait(('own',2)); k("s_barrier")
        misc[bpos]=h
        for sl in range(3,10): ds.append((bpos,1,f"ds_read_b128 {v(MF+4*sl,4)}, v{18+sl-3}",('m',sl)))
        for (p,D,off,tag) in done:
            for i,o in enumerate(g.comb(D)): valu[p+3+i]=o
            tw=g.twrite(D,off,sparseT)
            for i,o in enumerate(tw): ds.append((p+6,0,o,tag if i==len(tw)-1 else None))
        if split: return mf
        return g.stream(mf,ds,valu,misc,lq)
    def wpre(g,i,STG,NST,lq):
        B=STG+8*(i%NST)
        lq.op(f"ds_read_b128 {v(B,4)}, v25 offset:{i*2048}")
        lq.op(f"ds_read_b128 {v(B+4,4)}, v25 offset:{i*2048+1024}",('w',i))
    def plan(g, ntile, first_lds, nl):
        order=[(t,sl) for sl in range(3) for t in range(ntile)]+[(t,sl) for t in range(ntile) for sl in range(3,10)]
        return order
    def wo_load(g, sr, wo):
        k=g.k
        AR=[6,7,8,12,13]
        k(f"""s_mul_i32 s39, s{sW}, 36864
        s_mul_i32 s37, s2, {192*1280}
        s_mul_i32 s36, s{sW}, 320
        s_add_u32 s37, s37, s36
        s_movk_i32 s46, 3277""")
        for i in range(5):
            k(f"""v_add_u32 v10, {64*i}, v2
            v_mul_lo_u32 v11, v10, s46
            v_lshrrev_b32 v11, 16, v11
            v_mul_u32_u24 v14, 20, v11
            v_sub_u32 v14, v10, v14
            v_mul_u32_u24 v11, 1280, v11
            v_lshl_add_u32 v11, v14, 4, v11
            v_add_u32 v{AR[i]}, s37, v11""")
        k("""v_lshrrev_b32 v10, 4, v2
        v_lshlrev_b32 v10, 3, v10
        v_bfe_u32 v11, v2, 2, 2
        v_add_u32 v10, v10, v11
        v_mul_u32_u24 v10, 320, v10
        v_and_b32 v11, 3, v2
        v_lshl_add_u32 v10, v11, 3, v10
        v_add_u32 v9, s39, v10""")
        def issue(b):
            k(f"s_mov_b32 s46, {b*32*1280}\ns_mov_b32 s47, {(b*32+16)*1280}")
            for i in range(10):
                k(f"s_add_u32 m0, s39, {(b%3)*10240+i*1024}\nbuffer_load_dwordx4 v{AR[i%5]}, {srd(sr)}, s{46+i//5} offen lds")
        for b in range(3): issue(b)
        for b in range(6):
            k(f"s_waitcnt vmcnt({10*(min(b+2,5)-b)})")
            for t in range(10):
                for u in range(2):
                    k(f"ds_read_b64_tr_b16 {r(wo(t,b>>1)+4*(b&1)+2*u,2)}, v9 offset:{(b%3)*10240+4*u*320+t*32}")
                if t==4: k("s_waitcnt lgkmcnt(4)")
            k("s_waitcnt lgkmcnt(0)")
            if b+3<6: issue(b+3)
    def role_U(g):
        k=g.k
        k.label("ROLE_U")
        k(f"""s_load_dwordx4 s[40:43], s[0:1], 32
        s_mul_i32 s37, s2, 384
        s_mul_i32 s36, s{sW}, 96
        s_add_u32 s37, s37, s36
        s_waitcnt lgkmcnt(0)""")
        g.mk_srd(I0,40,640*12288); g.mk_srd(I1,42,6144*1280)
        g.au_common()
        NL=12
        TMP=32; MF=32; STG=72; NST=5; ACCV=112; SENT=124
        order=g.plan(3,0,NL)
        ldspos=[2,8,9,10,11,16,19,21,23,26,28,29]
        ldsu={order[p]:i for i,p in enumerate(ldspos)}
        free=[496,504]+[128+8*i for i in range(16)]
        regu={}
        for u in order:
            if u not in ldsu: regu[u]=free.pop(0)
        wo=lambda t,kk: 256+(t*3+kk)*8
        g.w96_setup(37,True)
        g.w96_load([(I0,sl,[(TMP+8*ldsu[(t,sl)] if (t,sl) in ldsu else regu[(t,sl)]) for t in range(3)]) for sl in range(10)],True,35)
        g.wo_load(I1,wo)
        g.au_addrs(True)
        g.spill(TMP,NL)
        g.loginit([0,1,6,7,8,9])
        MS=147456; TQ=MS+10240
        k(f"""v_lshrrev_b32 v10, 4, v2
        v_lshlrev_b32 v10, 3, v10
        v_bfe_u32 v11, v2, 2, 2
        v_add_u32 v10, v10, v11
        v_lshlrev_b32 v10, 5, v10
        v_and_b32 v11, 3, v2
        v_lshl_add_u32 v10, v11, 3, v10
        v_add_u32 v27, {TQ}, v10""")
        k(f"""v_lshrrev_b32 v10, 4, v2
        v_lshlrev_b32 v28, 14, v10
        v_mul_u32_u24 v10, 40960, v10
        v_and_b32 v11, 15, v2
        v_lshl_add_u32 v29, v11, 4, v10
        v_lshl_add_u32 v28, v11, 4, v28
        v_mov_b32 v{SENT}, -1
        v_mov_b32 v{SENT+1}, -1
        v_mov_b32 v{SENT+2}, -1
        v_mov_b32 v{SENT+3}, -1
        s_mul_i32 s44, s{sW}, {10*40960}
        s_lshl_b32 s46, s2, 8
        s_add_u32 s44, s44, s46
        s_add_u32 s44, s44, {VP+32768}
        s_mov_b32 s36, -1
        s_mov_b32 s37, 0
        s_mov_b32 s{sS}, 0""")
        g.wait_start(MF,4)
        k(f"""s_mul_i32 s45, s{sW}, {10*16384}
        s_lshl_b32 s46, s2, 8
        s_add_u32 s45, s45, s46
        s_add_u32 s45, s45, s{sPOL2}
        s_add_u32 s45, s45, {UR}
        s_add_u32 s43, s45, {3*40*16384}
        s_add_u32 s42, s45, {2*40*16384}
        s_lshl_b32 s41, s2, 7
        s_add_u32 s41, s41, {HN+4096}
        s_add_u32 s41, s41, s{sPOL2}
        v_mov_b32 v5, 0""")
        k.label("U_LOOP")
        lq=LQ(k,"lgkmcnt",15)
        for i in range(NST): g.wpre(i,STG,NST,lq)
        for i in range(12): k(f"v_mov_b32 v{ACCV+i}, 0")
        g.exslot(sEX,sS)
        k(f"s_add_u32 s48, s45, {4*16384}\ns_add_u32 s49, s45, {8*16384}")
        k(f"s_add_u32 s51, s{sS}, 1\nv_mov_b32 v4, s51")
        lq.drain()
        g.hint_wait(16,sS,list(range(MF+12,MF+12+g.NH)),g.nlA)
        g.poll([(MF+4*j,4,12+j,0) for j in range(3)],sEX,10)
        g.stamp(0)
        rest=g.proj_stream(order,ldsu,regu,MF,ACCV,STG,NST,lq,4,[(15,ACCV,0,'t0'),(22,ACCV+4,256,'t1')],True,[],{},{g.HU:lambda: k(f"s_cmp_lg_u32 s{sW}, 0\ns_cbranch_scc1 U_NH\ns_mov_b64 exec, 1\nbuffer_store_dword v4, v5, {srd(WS)}, s41 offen sc1\ns_mov_b64 exec, -1\nU_NH:")} if g.uh else {})
        g.stamp(3)
        for x in rest: lq.op(x[3],x[4])
        for i in range(6): k(f"v_mov_b32 v{STG+i}, 0")
        for x in g.comb(ACCV+8): k(x)
        for x in g.twrite(ACCV+8,512,True): lq.op(x)
        for i in range(6,16): k(f"v_mov_b32 v{STG+i}, 0")
        lq.drain(); k("s_barrier")
        for kk in range(3):
            for u in range(2): lq.op(f"ds_read_b64_tr_b16 {v(MF+4*kk+2*u,2)}, v27 offset:{(32*kk+4*u)*32}",('a',kk))
        for i in range(16,32): k(f"v_mov_b32 v{STG+i}, 0")
        g.stamp(4)
        PK=MF+16
        def tile(t):
            D=STG+4*t
            return [f"v_add_f32 v{D}, v{D}, v{D+1}", f"v_add_f32 v{D+2}, v{D+2}, v{D+3}", f"v_cvt_pk_bf16_f32 v{PK+t}, v{D}, v{D+2}"]
        def tr4(P): return [f"v_permlane16_swap_b32 v{P}, v{P+1}", f"v_permlane16_swap_b32 v{P+2}, v{P+3}", "s_nop 0",
                            f"v_permlane32_swap_b32 v{P}, v{P+2}", f"v_permlane32_swap_b32 v{P+1}, v{P+3}"]
        st=lambda P,so: f"buffer_store_dwordx4 {v(P,4)}, v28, {srd(WS)}, s{so} offen sc1"
        ops=[f"v_mov_b32 v{STG+i}, 0" for i in range(32,40)]
        for t in range(4): ops+=tile(t)
        t4=tile(4); x=tr4(PK)
        ops+=[t4[0],x[0],t4[1],x[1],t4[2],x[3],x[4],st(PK,45)]
        for t in range(5,8): ops+=tile(t)
        t8=tile(8); t9=tile(9); x=tr4(PK+4)
        ops+=[t8[0],t8[1],x[0],x[1],t8[2],t9[0],x[3],x[4],st(PK+4,48),t9[1],t9[2]]
        for pos in range(30):
            t,kk=divmod(pos,3)
            lq.wait(('a',kk))
            k(f"v_smfmac_f32_16x16x64_bf16 {v(STG+4*t,4)}, {v(MF+4*kk,4)}, {r(wo(t,kk),8)}, v17")
            if ops[0].startswith("buffer"): k(ops.pop(0))
            k(ops.pop(0))
        for x in ops+tr4(PK+8): k(x)
        k(f"""s_mov_b64 exec, s[36:37]
        buffer_store_dwordx4 {v(PK+8,4)}, v28, {srd(WS)}, s49 offen sc1""")
        g.stamp(1)
        def tri(regs, va, base, stride, add=0):
            k(f"""s_add_u32 s49, s{base}, {add+8*stride}
            s_mov_b64 exec, s[36:37]
            buffer_store_dwordx4 {v(regs[2],4)}, v{va}, {srd(WS)}, s49 offen sc1
            s_mov_b64 exec, -1
            s_add_u32 s48, s{base}, {add+4*stride}
            buffer_store_dwordx4 {v(regs[1],4)}, v{va}, {srd(WS)}, s48 offen sc1
            s_add_u32 s47, s{base}, {add}
            buffer_store_dwordx4 {v(regs[0],4)}, v{va}, {srd(WS)}, s47 offen sc1""")
        tri([PK,PK+4,PK+8],29,44,40960)
        tri([SENT]*3,28,42,16384)
        l=k.new("USK")
        k(f"s_cmp_ge_u32 s{sS}, {g.nseg-2}\ns_cbranch_scc1 {l}")
        tri([SENT]*3,29,44,40960,2*VP_S)
        k.label(l)
        k(f"""s_mov_b32 s42, s45
        s_add_u32 s45, s45, {40*16384}
        s_cmp_eq_u32 s45, s43
        s_cselect_b32 s46, {3*40*16384}, 0
        s_sub_u32 s45, s45, s46""")
        g.flush([0,1,3,4])
        k(f"""s_add_u32 s44, s44, {VP_S}
        s_add_u32 s{sS}, s{sS}, 1
        s_cmp_lt_u32 s{sS}, {g.nseg}
        s_cbranch_scc1 U_LOOP""")
        g.logdump(10)
        k("s_endpgm")
    def role_W(g):
        k=g.k
        k.label("ROLE_W")
        k("s_load_dwordx2 s[40:41], s[0:1], 40\ns_waitcnt lgkmcnt(0)")
        g.mk_srd(I1,40,6144*1280)
        wo=lambda t,kk: 256+(t*3+kk)*8
        g.wo_load(I1,wo)
        g.loginit([20,21,22,23,24,25])
        VX=[32,80]; VA=128; VPK=144
        k(f"""v_lshrrev_b32 v10, 4, v2
        v_lshlrev_b32 v10, 9, v10
        v_bfe_u32 v11, v2, 2, 2
        v_lshl_add_u32 v10, v11, 7, v10
        v_and_b32 v11, 3, v2
        v_lshl_add_u32 v28, v11, 4, v10
        v_lshlrev_b32 v30, 4, v2
        s_add_u32 s46, s2, 64
        s_lshl_b32 s46, s46, 7
        s_add_u32 s46, s46, {FP}
        v_mov_b32 v31, s46
        v_mov_b32 v5, 0
        s_mul_i32 s38, s{sW}, {10*40960}
        s_lshl_b32 s46, s2, 10
        s_add_u32 s38, s38, s46
        s_add_u32 s38, s38, {VP}
        s_add_u32 s45, s2, 64
        s_mul_i32 s45, s45, 12288
        s_add_u32 s45, s45, {QKV}
        s_lshl_b32 s43, s{sW}, 5
        s_add_u32 s43, s43, s2
        s_lshl_b32 s43, s43, 7
        s_add_u32 s43, s43, {FV}
        s_mov_b32 s41, 0
        s_mov_b32 s42, 0
        s_mov_b32 s{sS}, 0""")
        g.wait_start(12,4,pol=False)
        def vxload(B):
            k("s_mov_b32 s49, s45")
            for ks in range(6):
                if ks and ks%2==0: k("s_add_u32 s49, s49, 4096")
                for tl in range(2):
                    k(f"buffer_load_dwordx4 {v(B+(ks*2+tl)*4,4)}, v28, {srd(WS)}, s49 offen offset:{(ks&1)*2048+tl*64} sc1")
            k(f"s_add_u32 s45, s45, {QKV_S}")
        def vepi(t):
            A=VA+8*(t&1); P=VPK+4*(t&1)
            for q in range(4): k(f"v_cvt_pk_bf16_f32 v{P+q}, v{A+2*q}, v{A+2*q+1}")
            k(f"buffer_store_dwordx4 {v(P,4)}, v30, {srd(WS)}, s48 offen sc1\ns_add_u32 s48, s48, 40960")
        k.label("W_LOOP")
        for half in range(2):
            B=VX[half]; l=k.new("WH")
            k(f"s_cmp_lg_u32 s42, 0\ns_cbranch_scc1 {l}\ns_waitcnt vmcnt(0)")
            g.flag_set(sS,43,4,5)
            k(f"s_add_u32 s50, s{sS}, 1")
            g.flag_wait(31,41,50,10,slp=2)
            vxload(B)
            k("s_waitcnt vmcnt(0)")
            k.label(l)
            g.stamp(0)
            k(f"s_mov_b32 s48, s38\ns_waitcnt vmcnt(6)")
            for t in range(10):
                A=VA+8*(t&1)
                for ks in range(6):
                    for tl in range(2):
                        c="0" if ks==0 else v(A+4*tl,4)
                        k(f"v_mfma_f32_16x16x32_bf16 {v(A+4*tl,4)}, {v(B+(ks*2+tl)*4,4)}, {r(wo(t,ks>>1)+4*(ks&1),4)}, {c}")
                    if ks==4 and t>0: vepi(t-1)
                if t==4:
                    l2=k.new("WN")
                    k("s_waitcnt vmcnt(4)")
                    g.flag_set(sS,43,4,5)
                    k(f"""s_mov_b32 s42, 0
                    s_add_u32 s50, s{sS}, 2
                    s_cmp_gt_u32 s50, {g.nseg}
                    s_cbranch_scc1 {l2}""")
                    g.flag_wait(31,41,50,10,fail=l2)
                    vxload(VX[1-half])
                    k("s_mov_b32 s42, 1")
                    k.label(l2)
            vepi(9)
            g.flush([0])
            k(f"s_add_u32 s38, s38, {VP_S}\ns_add_u32 s{sS}, s{sS}, 1")
        k(f"""s_cmp_lt_u32 s{sS}, {g.nseg}
        s_cbranch_scc1 W_LOOP
        s_waitcnt vmcnt(0)
        s_movk_i32 s46, 128""")
        g.flag_set(46,43,4,5)
        g.logdump(10)
        k("s_endpgm")
    def role_A(g):
        k=g.k
        k.label("ROLE_A")
        g.mute = g.ast is not None
        k(f"""s_load_dwordx4 s[40:43], s[0:1], 16
        s_mul_i32 s37, s2, 384
        s_mul_i32 s36, s{sW}, 96
        s_add_u32 s37, s37, s36
        s_waitcnt lgkmcnt(0)""")
        g.mk_srd(I0,40,640*12288); g.mk_srd(I1,42,640*12288)
        g.au_common()
        TMP=32; MF=32; STG=72; NST=4; ACC=104; KX=128
        order=g.plan(6,0,18)
        ldspos=[1,2,10,11,16,19,22,24,26,28,30,33,35,37,40,42,44,47]
        ldsu={order[p]:i for i,p in enumerate(ldspos)}
        free=[256+8*i for i in range(32)]+[176+8*i for i in range(10)]
        regu={}
        for u in order:
            if u not in ldsu: regu[u]=free.pop(0)
        loc=lambda u: TMP+8*ldsu[u] if u in ldsu else regu[u]
        g.w96_setup(37,True)
        g.w96_load([((I0,I1)[m],sl,[loc((3*m+t,sl)) for t in range(3)]) for sl in range(10) for m in range(2)],True,35)
        g.au_addrs()
        g.spill(TMP,18)
        g.loginit([0,1,6,7,8,9])
        MS=147456; TQ=MS+10240; TK=TQ+3072
        k(f"""v_lshrrev_b32 v10, 4, v2
        v_lshlrev_b32 v10, 3, v10
        v_bfe_u32 v11, v2, 2, 2
        v_add_u32 v10, v10, v11
        v_lshlrev_b32 v10, 4, v10
        v_and_b32 v11, 1, v2
        v_lshl_add_u32 v10, v11, 3, v10
        v_add_u32 v27, {TQ}, v10
        v_mov_b32 v5, 0
        v_lshrrev_b32 v4, 4, v2
        v_lshlrev_b32 v4, 9, v4
        s_cmp_lg_u32 s{sW}, 0
        s_cbranch_scc1 A_SETX""")
        k(f"""v_bfe_u32 v11, v2, 3, 1
        v_lshl_add_u32 v10, v11, 8, v4
        v_bfe_u32 v11, v2, 1, 1
        v_lshl_add_u32 v10, v11, 6, v10
        v_bfe_u32 v11, v2, 2, 1
        v_lshl_add_u32 v10, v11, 5, v10
        v_and_b32 v11, 1, v2
        v_lshl_add_u32 v28, v11, 4, v10
        v_add_u32 v29, 128, v28
        s_lshr_b32 s46, s2, 3
        s_lshl_b32 s46, s46, 14
        s_and_b32 s47, s2, 7
        s_mul_i32 s47, s47, 640
        s_add_u32 s46, s46, s47
        v_lshrrev_b32 v10, 5, v2
        v_lshlrev_b32 v10, 8, v10
        v_and_b32 v11, 7, v2
        v_lshl_add_u32 v10, v11, 5, v10
        v_and_b32 v11, 24, v2
        v_add3_u32 v30, v10, v11, s46
        v_and_b32 v10, 7, v2
        v_lshlrev_b32 v10, 4, v10
        v_and_b32 v11, 8, v2
        v_add_u32 v10, v10, v11
        v_bfe_u32 v11, v2, 4, 1
        v_lshl_add_u32 v10, v11, 2, v10
        s_add_u32 s46, s46, 512
        v_add_u32 v31, s46, v10
        v_mov_b32 v3, 0
        v_mov_b32 v11, 0
        s_branch A_SETD
        A_SETX:
        v_bfe_u32 v11, v2, 2, 2
        v_lshl_add_u32 v10, v11, 7, v4
        v_and_b32 v11, 3, v2
        v_lshl_add_u32 v28, v11, 4, v10
        v_add_u32 v29, 64, v28
        s_and_b32 s46, s{sW}, 1
        s_lshl_b32 s47, s46, 8
        v_and_b32 v11, 15, v2
        v_lshl_add_u32 v10, v11, 4, s47
        v_add_u32 v3, v10, v4
        v_bfe_u32 v31, v2, 4, 1
        v_lshl_add_u32 v31, v31, 3, v10
        v_add_u32 v31, 2048, v31
        s_lshl_b32 s47, s46, 10
        v_lshl_add_u32 v30, v2, 4, s47
        s_lshl_b32 s47, s46, 4
        v_add_u32 v11, s47, v11
        v_lshrrev_b32 v10, 4, v2
        v_lshlrev_b32 v10, 3, v10
        v_sub_u32 v11, v11, v10
        A_SETD:
        s_lshl_b32 s46, s2, 7
        s_add_u32 s46, s46, {FP}
        v_and_b32 v10, 1, v2
        v_lshl_add_u32 v10, v10, 12, s46
        s_mul_i32 s45, s2, 12288
        s_add_u32 s45, s45, {QKV}
        s_mul_i32 s44, s2, 2560
        s_add_u32 s44, s44, {PX}
        s_lshl_b32 s43, s2, 1
        s_and_b32 s46, s{sW}, 1
        s_add_u32 s43, s43, s46
        s_lshl_b32 s43, s43, 7
        s_add_u32 s43, s43, {FX}
        s_mov_b64 s[38:39], 1
        s_mov_b32 s41, 0
        s_mov_b32 s40, {f2u(CEXP)}
        s_mov_b32 s36, 0xff00ff00
        s_mov_b32 s37, 0xff00ff00
        s_mov_b32 s{sS}, 0""")
        g.wait_start(MF,4)
        k(f"""s_lshl_b32 s46, s2, 7
        s_add_u32 s46, s46, {HN}
        s_add_u32 s46, s46, s{sPOL2}
        s_cmp_lt_u32 s{sW}, 2
        s_cselect_b32 s43, s46, s43
        s_cselect_b32 s42, 1, 0""")
        def kxload(base):
            k(f"s_add_u32 s48, s{base}, {32*12288}")
            for ks in range(6):
                if ks and ks%2==0: k("s_add_u32 s48, s48, 4096")
                for tl in range(2):
                    k(f"buffer_load_dwordx4 {v(KX+(ks*2+tl)*4,4)}, v{28+tl}, {srd(WS)}, s48 offen offset:{(ks&1)*2048} sc1")
        def kxnext():
            l=k.new("AKN")
            k(f"s_add_u32 s50, s{sS}, 2\ns_cmp_gt_u32 s50, {g.nseg}\ns_cbranch_scc1 {l}")
            g.flag_wait(10,41,50,4,slp=1)
            k(f"s_add_u32 s49, s45, {QKV_S}")
            kxload(49)
            k.label(l)
        k("s_mov_b32 s50, 1")
        g.flag_wait(10,41,50,4,slp=1)
        kxload(45)
        k.label("A_LOOP")
        lq=LQ(k,"lgkmcnt",15)
        for i in range(NST): g.wpre(i,STG,NST,lq)
        for i in range(24): k(f"v_mov_b32 v{ACC+i}, 0")
        g.exslot(sEX,sS)
        lq.drain()
        k(f"s_add_u32 s51, s{sS}, s42")
        g.hint_wait(16,sS,list(range(MF+12,MF+12+g.NH)),g.nlA)
        g.poll([(MF+4*j,4,12+j,0) for j in range(3)],sEX,4)
        g.stamp(0)
        ds=[]; misc={}; valu={}
        SPL=49
        def qb(): lq.wait(('t',2)); k("s_barrier")
        misc[SPL-1]=qb
        valu[13]="v_mov_b32 v4, s51"
        mf=g.proj_stream(order,ldsu,regu,MF,ACC,STG,NST,lq,5,[(24+7*t,ACC+4*t,(t//3)*3072+(t%3)*256,('t',t)) for t in range(5)],False,ds,valu,misc,split=True)
        rest0=g.stream(mf,ds,valu,misc,lq,0,SPL)
        rest0=[(x[0],x[1],x[3],x[4]) for x in rest0]
        SA=ACC; SB=ACC+4; SM=ACC+8
        def smx(ks,tl):
            c="0" if ks==0 else v(SA+4*tl,4)
            k(f"v_mfma_f32_16x16x32_bf16 {v(SA+4*tl,4)}, {v(KX+(ks*2+tl)*4,4)}, {v(STG+4*ks,4)}, {c}")
        def kmr(i,q=None):
            ks,u=divmod(i,2)
            t=f"ds_read_b64_tr_b16 {v(MF+4*ks+2*u,2)}, v27 offset:{3072+(32*ks+4*u)*16}"
            if q: q.op(t,('k',ks))
            else: k(t)
        def kmread():
            for i in range(12): kmr(i)
        def smm(ks):
            c="0" if ks==0 else v(SM,4)
            k(f"v_mfma_f32_16x16x32_bf16 {v(SM,4)}, {v(MF+4*ks,4)}, {v(STG+4*ks,4)}, {c}")
        import copy
        lqB=copy.copy(lq); lqB.tags=dict(lq.tags)
        k(f"s_cmp_lg_u32 s{sW}, 0\ns_cbranch_scc1 A_OTHER")
        dsq=[(SPL,3,f"ds_read_b64_tr_b16 {v(STG+4*(i//2)+2*(i%2),2)}, v27 offset:{(32*(i//2)+4*(i%2))*16}",('q',i)) for i in range(12)]
        rest=g.stream(mf,rest0+dsq,valu,misc,lq,SPL)
        g.stamp(3)
        D=ACC+20
        lq.wait(('q',3))
        smx(0,0)
        for x in rest[:2]: lq.op(x[3],x[4])
        smx(0,1)
        for x in rest[2:]: lq.op(x[3],x[4])
        for x in g.comb(D): k(x)
        smx(1,0)
        lq.op(g.twrite(D,3072+512,False)[0])
        smx(1,1); lq.wait(('q',5)); smx(2,0); smx(2,1)
        lq.drain(); k("s_barrier")
        g.stamp(4)
        for j,(ks,tl) in enumerate([(3,0),(3,1),(4,0),(4,1),(5,0),(5,1)]):
            for i in range(4):
                if 4*j+i<12: kmr(4*j+i,lq)
            smx(ks,tl)
        X=MF+24; M=MF+30; T=MF+31; Z=MF+32; ML=MF+37; F=MF+38
        side={3:[f"v_cndmask_b32 v{X+q}, v{SA+q}, v{SB+q}, s[36:37]" for q in range(2)],
              4:[f"v_cndmask_b32 v{X+q}, v{SA+q}, v{SB+q}, s[36:37]" for q in range(2,4)],
              5:[f"v_max3_f32 v{M}, v{X}, v{X+1}, v{X+2}", f"v_max_f32 v{M}, v{M}, v{X+3}"]}
        for ks in range(6):
            lq.wait(('k',ks)); smm(ks)
            if ks<3: k("s_nop 1")
            for x in side.get(ks,[]): k(x)
        g.stamp(1)
        for q in range(2): k(f"v_cndmask_b32 v{X+4+q}, v{SM+q}, v{SM+2+q}, s[36:37]")
        k(f"""v_max3_f32 v{M}, v{M}, v{X+4}, v{X+5}
        v_mul_f32 v{ML}, s40, v{M}
        v_fma_f32 v{X}, v{X}, s40, -v{ML}
        v_fma_f32 v{X+1}, v{X+1}, s40, -v{ML}
        v_max_f32_dpp v{M}, v{ML}, v{ML} row_ror:8 row_mask:0xf bank_mask:0xf
        v_fma_f32 v{X+2}, v{X+2}, s40, -v{ML}
        v_mov_b32 v{T}, v{M}
        v_fma_f32 v{X+3}, v{X+3}, s40, -v{ML}
        v_fma_f32 v{X+4}, v{X+4}, s40, -v{ML}
        v_permlane16_swap_b32 v{M}, v{T}
        v_fma_f32 v{X+5}, v{X+5}, s40, -v{ML}
        v_max_f32 v{M}, v{M}, v{T}
        v_mov_b32 v{T}, v{M}
        v_exp_f32 v{X}, v{X}
        v_exp_f32 v{X+1}, v{X+1}
        v_permlane32_swap_b32 v{M}, v{T}
        v_exp_f32 v{X+2}, v{X+2}
        v_max_f32 v{M}, v{M}, v{T}
        v_exp_f32 v{X+3}, v{X+3}
        v_sub_f32 v{F}, v{ML}, v{M}
        v_exp_f32 v{X+4}, v{X+4}
        v_exp_f32 v{X+5}, v{X+5}
        v_exp_f32 v{F}, v{F}
        v_add_f32 v{Z}, v{X}, v{X+1}
        v_add_f32 v{Z+1}, v{X+2}, v{X+3}
        v_add_f32 v{Z+2}, v{X+4}, v{X+5}
        v_add_f32 v{Z}, v{Z}, v{Z+1}
        v_fma_f32 v{Z}, v{Z+2}, 0.5, v{Z}
        v_mul_f32 v{Z}, v{Z}, v{F}
        v_mul_f32 v{X}, v{X}, v{F}
        v_mul_f32 v{X+1}, v{X+1}, v{F}
        v_add_f32_dpp v{Z}, v{Z}, v{Z} row_ror:8 row_mask:0xf bank_mask:0xf
        v_mov_b32 v{T}, v{Z}
        v_mul_f32 v{X+2}, v{X+2}, v{F}
        v_mul_f32 v{X+3}, v{X+3}, v{F}
        v_permlane16_swap_b32 v{Z}, v{T}
        v_add_f32 v{Z}, v{Z}, v{T}
        v_mov_b32 v{T}, v{Z}
        v_mul_f32 v{X+4}, v{X+4}, v{F}
        v_mul_f32 v{X+5}, v{X+5}, v{F}
        v_permlane32_swap_b32 v{Z}, v{T}
        v_add_f32 v{Z}, v{Z}, v{T}
        v_rcp_f32 v{Z}, v{Z}""")
        for q in range(4): k(f"v_mul_f32 v{X+q}, v{X+q}, v{Z}")
        k(f"""v_cvt_pk_bf16_f32 v{Z+2}, v{X}, v{X+1}
        v_cvt_pk_bf16_f32 v{Z+3}, v{X+2}, v{X+3}
        buffer_store_dwordx2 {v(Z+2,2)}, v30, {srd(WS)}, s{sEX} offen sc1
        v_mul_f32 v{X+4}, v{X+4}, v{Z}
        v_mul_f32 v{X+5}, v{X+5}, v{Z}
        s_mov_b32 exec_hi, 0
        v_cvt_pk_bf16_f32 v{Z+4}, v{X+4}, v{X+5}
        buffer_store_dword v{Z+4}, v31, {srd(WS)}, s{sEX} offen sc1
        s_mov_b32 exec_hi, -1""")
        g.stamp(2)
        kxnext()
        k("s_branch A_NEXT")
        k.label("A_OTHER")
        miscB={}
        gaps=[p for p in range(SPL,60) if p!=g.HA][:6]
        for ks in range(6):
            miscB[gaps[ks]]=lambda ks=ks: k((f"s_add_u32 s48, s45, {4096*(ks//2)}\n" if ks%2==0 else "")+f"buffer_load_dwordx4 {v(STG+4*ks,4)}, v3, {srd(WS)}, s48 offen offset:{(ks&1)*2048} sc1")
        miscB[g.HA]=lambda: k(f"s_mov_b64 exec, 1\nbuffer_store_dword v4, v5, {srd(WS)}, s43 offen sc1\ns_mov_b64 exec, -1")
        qw = 1 if g.HA>gaps[-1] else 0
        rest=g.stream(mf,rest0,valu,miscB,lqB,SPL)
        assert not rest
        g.stamp(3)
        for x in g.comb(ACC+20)+g.twrite(ACC+20,3072+512,False): k(x)
        k(f"""s_waitcnt lgkmcnt(0)
        s_barrier
        s_cmp_eq_u32 s{sW}, 1
        s_cbranch_scc1 A_W1""")
        kmread()
        k(f"s_waitcnt vmcnt({qw}) lgkmcnt(0)")
        for ks in range(6): smx(ks,0); smx(ks,1); smm(ks)
        kxnext()
        NEG=MF+33
        k(f"v_mov_b32 v{NEG}, 0xf149f2ca")
        for q in range(8):
            k(f"v_cmp_lt_i32 vcc, v11, v{NEG}" if False else f"v_cmp_gt_i32 vcc, {q}, v11")
            k(f"v_cndmask_b32 v{SA+q}, v{SA+q}, v{NEG}, vcc")
        k(f"v_max3_f32 v{M}, v{SA}, v{SA+1}, v{SA+2}")
        for q in range(3,11,2): k(f"v_max3_f32 v{M}, v{M}, v{SA+q}, v{SA+q+1}")
        k(f"v_max_f32 v{M}, v{M}, v{SA+11}")
        def red2(op,R):
            k(f"""v_mov_b32 v{T}, v{R}
            v_permlane16_swap_b32 v{R}, v{T}
            {op} v{R}, v{R}, v{T}
            v_mov_b32 v{T}, v{R}
            v_permlane32_swap_b32 v{R}, v{T}
            {op} v{R}, v{R}, v{T}""")
        red2("v_max_f32",M)
        k(f"v_mul_f32 v{M}, s40, v{M}")
        for q in range(12): k(f"v_fma_f32 v{SA+q}, v{SA+q}, s40, -v{M}")
        for q in range(12): k(f"v_exp_f32 v{SA+q}, v{SA+q}")
        k(f"v_add_f32 v{Z}, v{SM}, v{SM+1}\nv_add_f32 v{Z}, v{Z}, v{SM+2}\nv_add_f32 v{Z}, v{Z}, v{SM+3}\nv_mul_f32 v{Z}, 0.5, v{Z}")
        for q in range(8): k(f"v_add_f32 v{Z}, v{Z}, v{SA+q}")
        red2("v_add_f32",Z)
        k(f"v_rcp_f32 v{Z}, v{Z}")
        for q in range(12): k(f"v_mul_f32 v{SA+q}, v{SA+q}, v{Z}")
        for q in range(6): k(f"v_cvt_pk_bf16_f32 v{X+q}, v{SA+2*q}, v{SA+2*q+1}")
        k(f"""buffer_store_dwordx4 {v(X,4)}, v30, {srd(WS)}, s44 offen sc1
        s_mov_b32 exec_hi, 0
        buffer_store_dwordx2 {v(X+4,2)}, v31, {srd(WS)}, s44 offen sc1
        s_mov_b32 exec_hi, -1""")
        g.stamp(2)
        k("s_branch A_NEXT")
        k.label("A_W1")
        k(f"s_waitcnt vmcnt({qw})")
        k.label("A_NEXT")
        g.flush([0,1,2,3,4])
        k(f"""s_add_u32 s45, s45, {QKV_S}
        s_add_u32 s44, s44, {PX_S}
        s_add_u32 s{sS}, s{sS}, 1
        s_cmp_lt_u32 s{sS}, {g.nseg}
        s_cbranch_scc1 A_LOOP
        s_waitcnt vmcnt(0)
        s_cmp_lt_u32 s{sW}, 2
        s_cbranch_scc1 A_END
        v_mov_b32 v4, s{sS}
        s_mov_b64 exec, 1
        buffer_store_dword v4, v5, {srd(WS)}, s43 offen sc1
        A_END:""")
        g.mute=False
        g.logdump(4)
        k("s_endpgm")
    def role_R(g):
        k=g.k
        k.label("ROLE_R")
        k("s_load_dwordx2 s[40:41], s[0:1], 8\ns_waitcnt lgkmcnt(0)")
        g.mk_srd(I0,40,10240)
        g.loginit([100,101,102,103,104,105])
        k(f"""s_mul_i32 s36, s2, 205
        s_lshr_b32 s36, s36, 11
        s_mul_i32 s38, s36, {16384-2560}
        s_lshl_b32 s46, s2, 8
        s_add_u32 s38, s38, s46
        s_add_u32 s38, s38, 5120
        v_mov_b32 v8, -1
        v_mov_b32 v9, -1
        v_mov_b32 v10, -1
        v_mov_b32 v11, -1
        v_lshlrev_b32 v6, 4, v0
        v_lshlrev_b32 v3, 4, v2
        s_lshl_b32 s46, s2, 12
        s_add_u32 s46, s46, 65536""")
        k.label("R_FILL")
        k(f"""buffer_store_dwordx4 v[8:11], v6, {srd(WS)}, s46 offen sc1
        s_add_u32 s46, s46, {40*4096}
        s_cmp_lt_u32 s46, 0x400000
        s_cbranch_scc1 R_FILL""")
        k(f"""s_and_b32 s47, s{sW}, 1
        s_lshl_b32 s47, s47, 13
        s_cmp_ge_u32 s{sW}, 2
        s_cbranch_scc1 R_I2
        v_bfe_u32 v12, v2, 1, 3
        v_mul_u32_u24 v12, 1280, v12
        v_and_b32 v13, 1, v2
        v_lshl_add_u32 v12, v13, 4, v12
        s_lshl_b32 s46, s2, 5
        s_mov_b64 exec, 0xffff
        buffer_load_dwordx4 v[16:19], v12, {srd(I0)}, s46 offen
        s_add_u32 s47, s47, s38
        s_waitcnt vmcnt(0)
        v_min_u32 v16, -2, v16
        v_min_u32 v17, -2, v17
        v_min_u32 v18, -2, v18
        v_min_u32 v19, -2, v19
        buffer_store_dwordx4 v[16:19], v3, {srd(WS)}, s47 offen sc1
        s_mov_b64 exec, -1
        s_branch R_I3
        R_I2:
        s_cmp_ge_u32 s2, 32
        s_cbranch_scc1 R_I3
        s_lshr_b32 s46, s2, 3
        s_lshl_b32 s46, s46, 14
        s_add_u32 s47, s47, s46
        s_and_b32 s46, s2, 7
        s_mul_i32 s46, s46, 640
        s_add_u32 s47, s47, s46
        s_mov_b32 exec_hi, 0xff
        buffer_store_dwordx4 v[8:11], v3, {srd(WS)}, s47 offen sc1
        s_mov_b64 exec, -1
        R_I3:
        s_mul_i32 s46, s2, 40960
        s_add_u32 s46, s46, {VP+32768}
        buffer_store_dwordx4 v[8:11], v6, {srd(WS)}, s46 offen sc1
        s_add_u32 s46, s46, 4096
        buffer_store_dwordx4 v[8:11], v6, {srd(WS)}, s46 offen sc1
        s_add_u32 s46, s46, {VP_S}
        buffer_store_dwordx4 v[8:11], v6, {srd(WS)}, s46 offen sc1
        s_sub_u32 s46, s46, 4096
        buffer_store_dwordx4 v[8:11], v6, {srd(WS)}, s46 offen sc1
        s_lshl_b32 s46, s2, 14
        s_add_u32 s46, s46, {UR}""")
        for j in range(12):
            k(f"s_add_u32 s47, s46, {(j//4)*40*16384+(j%4)*4096}\nbuffer_store_dwordx4 v[8:11], v6, {srd(WS)}, s47 offen sc1")
        k(f"""s_cmp_ge_u32 s2, 24
        s_cbranch_scc1 R_I4
        v_mov_b32 v16, 0
        v_mov_b32 v17, 0
        v_mov_b32 v18, 0
        v_mov_b32 v19, 0
        s_lshl_b32 s46, s2, 12
        s_add_u32 s46, s46, {FLG}
        s_cmp_ge_u32 s2, 16
        s_cselect_b32 s47, {HN-FLG-65536}, 0
        s_add_u32 s46, s46, s47
        buffer_store_dwordx4 v[16:19], v6, {srd(WS)}, s46 offen sc1
        R_I4:
        s_waitcnt vmcnt(0)
        s_barrier
        s_cmp_lg_u32 s{sW}, 0
        s_cbranch_scc1 R_I5
        v_mov_b32 v4, 1
        v_mov_b32 v5, 0
        s_mov_b64 exec, 1
        buffer_atomic_add v4, v5, {srd(DBG)}, 0 offen sc1
        s_mov_b64 exec, -1
        R_I5:""")
        VXF=32; UF=64; PF=72; ACC=92
        k(f"""s_lshl_b32 s46, s{sW}, 14
        v_lshrrev_b32 v12, 5, v2
        v_mul_u32_u24 v12, 640, v12
        v_and_b32 v13, 31, v2
        v_lshl_add_u32 v12, v13, 4, v12
        v_add_u32 v12, s46, v12
        v_lshrrev_b32 v13, 4, v2
        v_mul_u32_u24 v13, 1280, v13
        v_and_b32 v14, 15, v2
        v_lshl_add_u32 v13, v14, 3, v13
        s_add_u32 s46, s46, 512
        v_add_u32 v13, s46, v13
        s_lshl_b32 s46, s36, 12
        s_lshl_b32 s47, s{sW}, 10
        s_add_u32 s46, s46, s47
        s_add_u32 s46, s46, {FV}
        v_and_b32 v14, 7, v2
        v_lshl_add_u32 v14, v14, 7, s46
        v_and_b32 v15, 15, v2
        v_lshlrev_b32 v15, 2, v15
        v_lshrrev_b32 v16, 4, v2
        v_lshl_add_u32 v15, v16, 7, v15
        s_lshl_b32 s46, s{sW}, 9
        v_add_u32 v15, s46, v15
        v_lshlrev_b32 v16, 3, v2
        v_mov_b32 v17, 0x4444
        v_mov_b32 v18, 0xeeee
        v_and_b32 v19, 1, v2
        v_cmp_ne_u32 vcc, 0, v19
        v_cndmask_b32 v17, v17, v18, vcc
        v_lshlrev_b32 v18, 2, v2
        v_add_u32 v18, s38, v18
        s_mul_i32 s44, s2, 40960
        s_add_u32 s44, s44, {VP}
        s_lshl_b32 s46, s{sW}, 13
        s_add_u32 s44, s44, s46
        s_mov_b32 s41, 0
        s_mov_b32 s{sS}, 0""")
        g.wait_start(20,4)
        k(f"""s_lshl_b32 s45, s2, 14
        s_lshl_b32 s46, s{sW}, 11
        s_add_u32 s45, s45, s46
        s_add_u32 s45, s45, s{sPOL2}
        s_add_u32 s45, s45, {UR}
        s_add_u32 s43, s45, {3*40*16384}
        s_lshl_b32 s42, s2, 7
        s_add_u32 s42, s42, {HN+16384}
        s_add_u32 s42, s42, s{sPOL2}
        v_mov_b32 v5, 0
        s_lshl_b32 s46, s{sW}, 10
        s_add_u32 s46, s46, {HN}
        v_add_u32 v19, s2, v2
        v_and_b32 v19, 7, v19
        v_lshl_add_u32 v19, v19, 7, s46
        v_and_b32 v28, 8, v2
        v_lshl_add_u32 v19, v28, 9, v19""")
        k.label("R_LOOP")
        k(f"s_add_u32 s50, s{sS}, 1")
        g.flag_wait(14,41,50,4,slp=1)
        k("s_add_u32 s48, s44, 4096")
        for j in range(8): k(f"buffer_load_dwordx4 {v(VXF+4*j,4)}, v3, {srd(WS)}, s{44 if j<4 else 48} offen offset:{(j&3)*1024} sc1")
        g.exslot(sEX,sS); g.exslot(49,sS,1)
        def rnd(first):
            ex=1 if first else 0
            if g.hint:
                for q in range(2): k(f"buffer_load_dwordx4 {v(UF+4*q,4)}, v3, {srd(WS)}, s45 offen offset:{q*1024} sc1")
            for j in range(4): k(f"buffer_load_dwordx4 {v(PF+4*j,4)}, v12, {srd(WS)}, s{sEX} offen offset:{j*1280} sc1")
            k(f"buffer_load_dwordx2 {v(PF+16,2)}, v13, {srd(WS)}, s{sEX} offen sc1\nbuffer_load_dwordx2 {v(PF+18,2)}, v13, {srd(WS)}, s{sEX} offen offset:640 sc1")
            def hint():
                k(f"""s_barrier
                s_mov_b64 exec, 1
                s_cmp_lg_u32 s{sW}, 1
                s_cbranch_scc1 R_NH
                buffer_store_dword v28, v5, {srd(WS)}, s42 offen sc1
                s_branch R_NH2
                R_NH:
                buffer_load_dword v29, v19, {srd(WS)}, s{sPOL2} offen sc1
                R_NH2:
                s_mov_b64 exec, -1""")
            if first:
                if g.HR: k("s_waitcnt vmcnt(7)")
                hint()
            else: g.budget()
            for i in range(4): k(f"v_mov_b32 v{ACC+i}, 0")
            if g.hint:
                k(f"s_waitcnt vmcnt({6+ex})\nv_max3_u32 v4, v{UF}, v{UF+1}, v{UF+2}")
                for q in (3,5): k(f"v_max3_u32 v4, v4, v{UF+q}, v{UF+q+1}")
                k(f"v_max_u32 v4, v4, v{UF+7}")
            else: k("v_mov_b32 v4, 0")
            for j in range(5):
                P=PF+4*j
                k(f"s_waitcnt vmcnt({(5-j if j<4 else 0)+ex})\nv_smfmac_f32_16x16x64_bf16 {v(ACC,4)}, {v(P,4)}, {v(VXF+8*j,8)}, v17")
                k(f"v_max3_u32 v4, v4, v{P}, v{P+1}\nv_max3_u32 v4, v4, v{P+2}, v{P+3}")
            k("v_cmp_eq_u32 vcc, -1, v4")
        if g.hint:
            k("v_mov_b32 v28, s50\ns_waitcnt vmcnt(0)")
            g.hint_wait(19,50,list(range(110,110+g.NH)),16 if g.uh else g.nlR)
            g.stamp(0)
            rnd(True)
            k("s_cbranch_vccz R_OK")
        else:
            g.poll([(UF,4,3,0),(UF+4,4,3,1024)],45,4)
            g.stamp(0)
        k.label("R_PP")
        if g.log: k("s_add_u32 s70, s70, 1")
        rnd(False)
        k("s_cbranch_vccnz R_PP")
        k.label("R_OK")
        g.stamp(1)
        k(f"""v_add_f32 v{ACC}, v{ACC}, v{ACC+1}
        v_add_f32 v{ACC+1}, v{ACC+2}, v{ACC+3}
        ds_write2_b32 v15, v{ACC}, v{ACC+1} offset0:0 offset1:16
        s_waitcnt lgkmcnt(0)
        s_barrier
        s_cmp_lg_u32 s{sW}, 0
        s_cbranch_scc1 R_NEXT
        ds_read2_b64 v[20:23], v16 offset0:0 offset1:64
        ds_read2_b64 v[24:27], v16 offset0:128 offset1:192
        s_waitcnt lgkmcnt(1)
        v_add_f32 v20, v20, v22
        v_add_f32 v21, v21, v23
        s_waitcnt lgkmcnt(0)
        v_add_f32 v24, v24, v26
        v_add_f32 v25, v25, v27
        v_add_f32 v20, v20, v24
        v_add_f32 v21, v21, v25
        v_cvt_pk_bf16_f32 v20, v20, v21
        buffer_store_dword v20, v18, {srd(WS)}, s49 offen sc1""")
        g.stamp(2)
        k.label("R_NEXT")
        g.flush([0,1,2,3])
        k(f"""s_add_u32 s44, s44, {VP_S}
        s_add_u32 s45, s45, {40*16384}
        s_cmp_eq_u32 s45, s43
        s_cselect_b32 s46, {3*40*16384}, 0
        s_sub_u32 s45, s45, s46
        s_add_u32 s{sS}, s{sS}, 1
        s_cmp_lt_u32 s{sS}, {g.nseg-1}
        s_cbranch_scc1 R_LOOP""")
        g.logdump(4)
        k("s_endpgm")
    def role_T(g):
        k=g.k
        k.label("ROLE_T")
        k(f"""s_cmp_lg_u32 s{sW}, 0
        s_cbranch_scc1 EXIT
        s_lshl_b32 s46, s2, 21
        s_add_u32 s46, s46, 7680
        s_cmp_eq_u32 s2, 2
        s_cselect_b32 s46, {HN+65536}, s46
        v_mov_b32 v4, -1
        v_mov_b32 v5, 0
        s_mov_b32 s40, -1
        s_mov_b32 s41, -1
        s_mov_b64 exec, 1""")
        for t in range(18):
            po=t&1; q=t>>1
            k(f"""s_add_u32 s47, s46, {po*8192+(q&3)*16384+(q>>2)*128}
            s_memtime s[42:43]
            s_waitcnt lgkmcnt(0)
            buffer_store_dword v4, v5, {srd(WS)}, s47 offen sc1
            s_waitcnt vmcnt(0)
            s_memtime s[44:45]
            s_waitcnt lgkmcnt(0)
            s_sub_u32 s44, s44, s42""")
            if t>=2: k(f"s_min_u32 s{40+po}, s{40+po}, s44")
        k(f"""s_cmp_lt_u32 s41, s40
        s_cselect_b32 s44, 3, 2
        v_mov_b32 v4, s44
        s_lshl_b32 s46, s2, 2
        buffer_store_dword v4, v5, {srd(DBG)}, s46 offen offset:4 sc1""")
        if g.log: k(f"v_mov_b32 v8, s40\nv_mov_b32 v9, s41\ns_lshl_b32 s46, s2, 3\nbuffer_store_dwordx2 v[8:9], v5, {srd(DBG)}, s46 offen offset:128")
        k("s_endpgm")
    def role_O(g):
        k=g.k
        k.label("ROLE_O")
        k("s_load_dwordx2 s[40:41], s[0:1], 88\ns_waitcnt lgkmcnt(0)")
        g.mk_srd(OUT,40,2048*2560)
        g.loginit([20,21,22,23,24,25])
        VA=256; UF=32; PXF=64; PMF=128; ACC=144; RD=176
        k(f"""s_lshr_b32 s36, s2, 1
        s_and_b32 s{sS}, s2, 1
        v_lshlrev_b32 v3, 4, v2
        v_and_b32 v12, 7, v2
        v_lshlrev_b32 v12, 7, v12
        v_bfe_u32 v13, v2, 3, 2
        v_lshl_add_u32 v12, v13, 12, v12
        s_lshl_b32 s46, s{sW}, 10
        s_add_u32 s46, s46, {FV}
        v_add_u32 v12, s46, v12
        s_lshl_b32 s46, s{sW}, 11
        s_add_u32 s46, s46, {FX}
        v_and_b32 v13, 15, v2
        v_lshl_add_u32 v13, v13, 7, s46
        v_lshrrev_b32 v14, 4, v2
        v_mul_u32_u24 v14, 2560, v14
        v_and_b32 v15, 15, v2
        v_lshl_add_u32 v14, v15, 4, v14
        v_add_u32 v14, 2048, v14
        s_lshl_b32 s46, s{sW}, 13
        v_add_u32 v15, s46, v3
        s_lshl_b32 s46, s{sW}, 11
        v_add_u32 v16, s46, v3
        v_and_b32 v17, 31, v2
        v_mul_u32_u24 v17, 2560, v17
        v_lshrrev_b32 v18, 5, v2
        v_lshl_add_u32 v17, v18, 4, v17
        s_lshl_b32 s46, s36, 7
        s_lshl_b32 s47, s{sW}, 5
        s_add_u32 s46, s46, s47
        v_add_u32 v17, s46, v17
        s_mul_i32 s44, s36, {4*40960}
        s_add_u32 s44, s44, {VP}
        s_mul_i32 s45, s{sW}, {8*2560}
        s_add_u32 s45, s45, {PX}
        s_mov_b32 s41, 0
        s_mov_b32 s42, 0""")
        for c in range(4): k(f"s_lshl_b32 s46, s{sW}, 11\ns_add_u32 s46, s46, {c*40960+32768}\nv_add_u32 v{6+c}, s46, v3")
        g.wait_start(28,4,pol=False)
        k.label("O_LOOP")
        k(f"s_add_u32 s50, s{sS}, 1")
        g.flag_wait(12,41,50,4,slp=8)
        k(f"""s_mul_i32 s48, s{sS}, {VP_S}
        s_add_u32 s48, s48, s44
        s_lshl_b32 s46, s{sW}, 13
        s_add_u32 s46, s46, s48""")
        for c in range(4):
            for j in range(8):
                if j==4: k("s_add_u32 s46, s46, 4096")
                k(f"buffer_load_dwordx4 {r(VA+(c*8+j)*4,4)}, v3, {srd(WS)}, s46 offen offset:{(j&3)*1024} sc1")
            k(f"s_add_u32 s46, s46, {40960-4096}")
        g.flag_wait(13,42,50,4,slp=8)
        g.stamp(0)
        k(f"s_mul_i32 s49, s{sS}, {PX_S}\ns_add_u32 s49, s49, s45\ns_add_u32 s47, s49, {4*2560}")
        for q in range(2):
            for tt in range(2):
                k(f"buffer_load_dwordx4 {v(PMF+(q*2+tt)*4,4)}, v14, {srd(WS)}, s{(49,47)[q]} offen offset:{tt*256} sc1")
        for j in range(8):
            for tt in range(2):
                k(f"buffer_load_dwordx4 {v(PXF+(j*2+tt)*4,4)}, v3, {srd(WS)}, s49 offen offset:{tt*1024} sc1")
            k("s_add_u32 s49, s49, 2560")
        g.poll([(UF+(c*2+q)*4,4,6+c,q*1024) for c in range(4) for q in range(2)],48,4)
        for j in range(10):
            for c in range(4):
                for tt in range(2):
                    A = r(VA+(c*8+j)*4,4) if j<8 else v(UF+(c*2+j-8)*4,4)
                    B = v(PXF+(j*2+tt)*4,4) if j<8 else v(PMF+((j-8)*2+tt)*4,4)
                    D = v(ACC+(c*2+tt)*4,4)
                    k(f"v_mfma_f32_16x16x32_bf16 {D}, {A}, {B}, {'0' if j==0 else D}")
        for i in range(8): k(f"ds_write_b128 v15, {v(ACC+4*i,4)} offset:{i*1024}")
        k("s_waitcnt lgkmcnt(0)\ns_barrier")
        for w in range(4):
            for tt in range(2): k(f"ds_read_b128 {v(RD+(w*2+tt)*4,4)}, v16 offset:{w*8192+tt*1024}")
        k("s_waitcnt lgkmcnt(0)\ns_barrier")
        for w in range(1,4):
            for i in range(8): k(f"v_add_f32 v{RD+i}, v{RD+i}, v{RD+8*w+i}")
        for i in range(4): k(f"v_cvt_pk_bf16_f32 v{RD+8+i}, v{RD+2*i}, v{RD+2*i+1}")
        k(f"""s_mul_i32 s46, s{sS}, {32*2560}
        v_permlane16_swap_b32 v{RD+8}, v{RD+10}
        v_permlane16_swap_b32 v{RD+9}, v{RD+11}
        buffer_store_dwordx4 {v(RD+8,4)}, v17, {srd(OUT)}, s46 offen""")
        g.stamp(1); g.flush([0,1])
        k(f"""s_add_u32 s{sS}, s{sS}, 2
        s_cmp_lt_u32 s{sS}, {g.nseg}
        s_cbranch_scc1 O_LOOP""")
        g.logdump(4)
        k("s_endpgm")
    def role_B(g):
        k=g.k
        k.label("ROLE_B")
        g.stamp(5,3)
        k("""s_load_dwordx8 s[40:47], s[0:1], 56
        s_load_dwordx2 s[48:49], s[0:1], 88
        s_waitcnt vmcnt(0) lgkmcnt(0)
        s_barrier""")
        g.mk_srd(I0,40,2048*1280); g.mk_srd(I1,42,640*3840); g.mk_srd(I2,44,32*800); g.mk_srd(OUT,48,2048*2560)
        k("s_mov_b32 s58, s46\ns_mov_b32 s59, s47")
        RING=0; PHK=81920; VL=PHK+40960; KVT=VL+24576; ZR=KVT+7680; WPH=ZR+64
        XA=256; WP=256+160; PQ=160; ACC=32; FA=72; WF=128; NWF=6; KVA=240; T0=112
        LOG2E=f2u(math.log2(math.e))
        k(f"""s_and_b32 s35, s2, 7
        s_lshr_b32 s36, s2, 3
        v_mov_b32 v5, 0
        v_lshlrev_b32 v3, 4, v2""")
        def dma_addrs(stride):
            k(f"s_movk_i32 s46, 6554\ns_mul_i32 s47, s{sW}, {32*stride}\ns_mul_i32 s50, s35, 160\ns_add_u32 s47, s47, s50")
            for i in range(5):
                k(f"""v_add_u32 v12, {64*i}, v2
                v_mul_lo_u32 v13, v12, s46
                v_lshrrev_b32 v13, 16, v13
                v_mul_u32_u24 v14, 10, v13
                v_sub_u32 v14, v12, v14
                v_and_b32 v12, 19, v13
                v_bfe_u32 v15, v13, 2, 1
                v_lshl_add_u32 v12, v15, 3, v12
                v_bfe_u32 v15, v13, 3, 1
                v_lshl_add_u32 v12, v15, 2, v12
                v_mul_u32_u24 v12, {stride}, v12
                v_lshl_add_u32 v12, v14, 4, v12
                v_add_u32 v{6+i}, s47, v12""")
        def issue(i): k(f"s_add_u32 m0, s39, {i*1024}\nbuffer_load_dwordx4 v{6+i}, {srd(I1)}, s37 offen lds")
        def adv():
            k(f"""s_add_u32 s37, s37, s41
            s_add_u32 s38, s38, 1
            s_add_u32 s46, s40, s42
            s_cmp_eq_u32 s46, s43
            s_cselect_b32 s46, 0, s46
            s_cmp_eq_u32 s38, 5
            s_cselect_b32 s40, s46, s40
            s_cselect_b32 s37, s46, s37
            s_cselect_b32 s38, 0, s38
            s_add_u32 s39, s39, 20480
            s_cmp_ge_u32 s39, 81920
            s_cselect_b32 s46, 81920, 0
            s_sub_u32 s39, s39, s46""")
        def start_stream(stride,col0,cstep,cwrap):
            dma_addrs(stride)
            k(f"""s_mov_b32 s37, {col0}
            s_mov_b32 s40, {col0}
            s_mov_b32 s38, 0
            s_mul_i32 s39, s{sW}, 5120
            s_mov_b32 s41, {128*stride}
            s_mov_b32 s42, {cstep}
            s_mov_b32 s43, {cwrap}
            s_mov_b32 s44, 0
            v_mov_b32 v11, v16""")
            for st in range(3):
                for i in range(5): issue(i)
                adv()
        k("""v_lshrrev_b32 v12, 5, v2
        v_lshlrev_b32 v12, 4, v12
        v_bfe_u32 v13, v2, 4, 1
        v_lshl_add_u32 v12, v13, 2, v12
        v_bfe_u32 v13, v2, 2, 2
        v_add_u32 v12, v12, v13
        v_mul_u32_u24 v12, 160, v12
        v_and_b32 v13, 3, v2
        v_mul_u32_u24 v13, 40, v13
        v_add_u32 v16, v12, v13""")
        start_stream(3840,1280,1280,3840)
        k(f"""s_lshl_b32 s46, s{sW}, 5
        v_and_b32 v12, 15, v2
        v_add_u32 v12, s46, v12
        v_lshrrev_b32 v13, 4, v2
        v_mul_u32_u24 v17, 1280, v12
        v_lshl_add_u32 v17, v13, 4, v17
        v_mul_u32_u24 v18, 320, v12
        v_mul_u32_u24 v14, 80, v13
        v_add3_u32 v18, v18, v14, {PHK >> 16}
        v_mul_u32_u24 v19, 192, v12
        v_mul_u32_u24 v14, 48, v13
        v_add_u32 v19, v19, v14
        v_add_u32 v19, {VL}, v19
        v_add_u32 v18, {PHK-(PHK>>16)}, v18
        v_mul_u32_u24 v14, 40, v13
        v_mul_u32_u24 v20, 1280, v12
        v_add_u32 v20, v20, v14
        v_mul_u32_u24 v21, 2560, v12
        v_add_u32 v21, v21, v14
        s_mul_i32 s45, s36, {256*1280}""")
        def xload(sr,base,fl):
            for tt in range(2):
                k(f"s_add_u32 s46, s45, {base+tt*16*1280}")
                for ks in range(20): k(f"buffer_load_dwordx4 {r(XA+(ks*2+tt)*4,4)}, v17, {srd(sr)}, s46 offen offset:{ks*64} {fl}")
        xload(I0,0,"")
        k(f"""s_mul_i32 s46, s35, 3200
        s_lshl_b32 s47, s{sW}, 10
        s_add_u32 s46, s46, s47
        s_add_u32 m0, s47, {WPH}
        v_mov_b32 v12, 0
        v_mov_b32 v13, 0
        v_mov_b32 v14, 0
        v_mov_b32 v15, 0
        v_add_u32 v23, s46, v3
        buffer_load_dwordx4 v23, {srd(I2)}, 0 offen lds
        v_and_b32 v22, 48, v3
        v_add_u32 v22, {ZR}, v22
        ds_write_b128 v22, v[12:15]
        s_waitcnt vmcnt(0) lgkmcnt(0)
        s_barrier
        v_lshrrev_b32 v12, 4, v2
        v_mul_u32_u24 v13, 800, v12
        v_bfe_u32 v14, v2, 2, 2
        v_mul_u32_u24 v14, 40, v14
        v_add_u32 v13, v13, v14
        v_add_u32 v13, {WPH}, v13
        v_and_b32 v14, 3, v2
        v_cmp_eq_u32 s[56:57], v12, v14""")
        for t in range(5):
            for u in range(5):
                k(f"""v_add_u32 v14, {u*160+t*8}, v13
                v_mov_b32 v15, {ZR}
                v_cndmask_b32 v14, v15, v14, s[56:57]
                ds_read_b64_tr_b16 {r(WP+t*10+2*u,2)}, v14""")
            k("s_waitcnt lgkmcnt(0)")
        k(f"""v_lshrrev_b32 v12, 4, v2
        v_lshlrev_b32 v12, 3, v12
        v_bfe_u32 v13, v2, 2, 2
        v_add_u32 v12, v12, v13
        v_and_b32 v13, 3, v2
        v_lshlrev_b32 v13, 3, v13
        s_mul_i32 s46, s{sW}, 80
        s_add_u32 s46, s46, {PHK}
        v_mul_u32_u24 v22, 320, v12
        v_add3_u32 v22, v22, v13, s46
        s_mul_i32 s46, s{sW}, 48
        s_add_u32 s46, s46, {VL}
        v_mul_u32_u24 v23, 192, v12
        v_add3_u32 v23, v23, v13, s46
        s_mov_b32 s50, {LOG2E}
        s_mov_b32 s{sS}, 0""")
        for i in range(16): k(f"v_mov_b32 v{KVA+i}, 0")
        for i in range(8): k(f"v_mov_b32 v{24+i}, 0")
        kva=lambda T,N: (KVA+(T*2+N)*4) if T<2 else 24+4*N
        k.label("B_GEMM")
        k("s_waitcnt vmcnt(0)")
        for st in range(5):
            k("s_waitcnt vmcnt(10)\ns_barrier")
            lq=LQ(k,"lgkmcnt",15)
            def rd(f):
                kl,t=divmod(f,5)
                for u in range(2): lq.op(f"ds_read_b64_tr_b16 {v(WF+4*(f%NWF)+2*u,2)}, v11 offset:{(32*kl+8*u)*160+t*8}",f)
            for f in range(NWF-1): rd(f)
            for f in range(20):
                kl,t=divmod(f,5); ks=4*st+kl
                lq.wait(f)
                for tt in range(2):
                    D=v(ACC+20*tt+4*t,4)
                    k(f"v_mfma_f32_16x16x32_bf16 {D}, {v(WF+4*(f%NWF),4)}, {r(XA+(ks*2+tt)*4,4)}, {'0' if ks==0 else D}")
                    if tt==0 and f+NWF-1<20: rd(f+NWF-1)
                if f%3==1 and f//3<5: issue(f//3)
                if f==16: adv()
            k(f"""s_add_u32 s44, s44, 1
            s_and_b32 s44, s44, 3
            s_mov_b32 s46, 20480
            s_cselect_b32 s46, s46, {(-3*20480)&0xffffffff}
            v_add_u32 v11, s46, v11""")
        k(f"""s_cmp_ge_u32 s{sS}, 6
        s_cbranch_scc1 B_OUT
        s_cmp_eq_u32 s{sS}, 1
        s_cbranch_scc1 B_V
        s_cmp_eq_u32 s{sS}, 4
        s_cbranch_scc1 B_V""")
        l=k.new("BX")
        k(f"s_cmp_lg_u32 s{sS}, 2\ns_cbranch_scc1 {l}")
        xload(I0,128*1280,"")
        k.label(l)
        for tt in range(2):
            A=ACC+20*tt
            for j in range(10): k(f"v_cvt_pk_bf16_f32 v{T0+j}, v{A+2*j}, v{A+2*j+1}")
            for t in range(5):
                D=v(FA+4*t,4)
                k(f"v_mfma_f32_16x16x32_bf16 {D}, {r(WP+t*10,4)}, {v(T0,4)}, 0")
            for t in range(5):
                D=v(FA+4*t,4)
                k(f"v_mfma_f32_16x16x32_bf16 {D}, {r(WP+t*10+4,4)}, {v(T0+4,4)}, {D}")
            for t in range(5):
                D=v(FA+4*t,4)
                k(f"v_mfma_f32_16x16x16_bf16 {D}, {r(WP+t*10+8,2)}, {v(T0+8,2)}, {D}")
            for j in range(10): k(f"v_cvt_pk_bf16_f32 v{T0+j}, v{FA+2*j}, v{FA+2*j+1}")
            for j in range(10): k(f"v_lshlrev_b32 v{FA+2*j}, 16, v{T0+j}\nv_and_b32 v{FA+2*j+1}, 0xffff0000, v{T0+j}")
            MX=T0+10; MN=T0+11; FB_=FA+20
            k(f"v_max_f32 v{MX}, v{FA}, v{FA+1}\nv_min_f32 v{MN}, v{FA}, v{FA+1}")
            for j in range(1,10): k(f"v_max3_f32 v{MX}, v{MX}, v{FA+2*j}, v{FA+2*j+1}\nv_min3_f32 v{MN}, v{MN}, v{FA+2*j}, v{FA+2*j+1}")
            k(f"v_mul_f32 v{MX}, s50, v{MX}\nv_mul_f32 v{MN}, s50, v{MN}")
            for j in range(20): k(f"v_fma_f32 v{FB_+j}, -v{FA+j}, s50, v{MN}\nv_fma_f32 v{FA+j}, v{FA+j}, s50, -v{MX}")
            for j in range(40): k(f"v_exp_f32 v{FA+j}, v{FA+j}")
            k(f"v_add_f32 v{MX}, v{FA}, v{FA+1}\nv_add_f32 v{MN}, v{FB_}, v{FB_+1}")
            for j in range(2,20): k(f"v_add_f32 v{MX}, v{MX}, v{FA+j}\nv_add_f32 v{MN}, v{MN}, v{FB_+j}")
            k(f"v_rcp_f32 v{MX}, v{MX}\nv_rcp_f32 v{MN}, v{MN}")
            for j in range(20): k(f"v_mul_f32 v{FA+j}, v{FA+j}, v{MX}\nv_mul_f32 v{FB_+j}, v{FB_+j}, v{MN}")
            for j in range(20): k(f"v_cvt_pk_bf16_f32 v{A+j}, v{FA+2*j}, v{FA+2*j+1}")
        k(f"""s_cmp_eq_u32 s{sS}, 2
        s_cbranch_scc1 B_Q0
        s_cmp_eq_u32 s{sS}, 5
        s_cbranch_scc1 B_Q1""")
        for tt in range(2):
            for j in range(5): k(f"ds_write_b128 v18, {v(ACC+20*tt+4*j,4)} offset:{tt*16*320+j*16}")
        k("s_waitcnt lgkmcnt(0)\ns_branch B_NEXT")
        k.label("B_Q0")
        for j in range(40): k(f"v_mov_b32 v{PQ+j}, v{ACC+j}")
        k.label("B_NEXT")
        k(f"s_add_u32 s{sS}, s{sS}, 1\ns_branch B_GEMM")
        k.label("B_V")
        for tt in range(2):
            P=FA+12*tt
            for j in range(10): k(f"v_cvt_pk_bf16_f32 v{P+j}, v{ACC+20*tt+2*j}, v{ACC+20*tt+2*j+1}")
            k(f"v_mov_b32 v{P+10}, 0x3f80\nv_mov_b32 v{P+11}, 0")
            for j in range(3): k(f"ds_write_b128 v19, {v(P+4*j,4)} offset:{tt*16*192+j*16}")
        k("s_waitcnt lgkmcnt(0)\ns_barrier")
        for ks in range(4):
            B0=ACC+20*(ks&1)
            for T in range(3):
                for u in range(2): k(f"ds_read_b64_tr_b16 {v(B0+4*T+2*u,2)}, v22 offset:{(32*ks+4*u)*320+T*32}")
            for N in range(2):
                for u in range(2): k(f"ds_read_b64_tr_b16 {v(B0+12+4*N+2*u,2)}, v23 offset:{(32*ks+4*u)*192+N*32}")
            k("s_waitcnt lgkmcnt(0)")
            for T in range(3):
                for N in range(2):
                    D=v(kva(T,N),4)
                    k(f"v_mfma_f32_16x16x32_bf16 {D}, {v(B0+4*T,4)}, {v(B0+12+4*N,4)}, {D}")
        l=k.new("BP")
        k(f"s_cmp_lg_u32 s{sS}, 4\ns_cbranch_scc1 B_NEXT")
        k(f"""s_lshl_b32 s46, s35, 3
        s_add_u32 s46, s46, s36
        s_lshl_b32 s51, s46, 7
        s_add_u32 s51, s51, {FB}
        s_lshl_b32 s46, s46, 2
        s_add_u32 s46, s46, s{sW}
        s_mul_i32 s46, s46, 6144
        s_add_u32 s46, s46, {KVP}
        s_add_u32 s47, s46, 4096""")
        for T in range(3):
            for N in range(2):
                i=T*2+N
                k(f"buffer_store_dwordx4 {v(kva(T,N),4)}, v3, {srd(WS)}, s{46 if i<4 else 47} offen offset:{(i&3)*1024} sc1")
        k(f"""s_waitcnt vmcnt(0)
        s_barrier
        s_cmp_lg_u32 s{sW}, 0
        s_cbranch_scc1 B_NEXT
        s_mov_b32 s46, 1""")
        g.flag_set(46,51,4,5)
        k("s_branch B_NEXT")
        k.label("B_Q1")
        for j in range(40): k(f"v_mov_b32 v{PQ+40+j}, v{ACC+j}")
        k("s_waitcnt vmcnt(0)\ns_barrier")
        g.mk_srd(I1,58,640*1280)
        start_stream(1280,0,0,1)
        k(f"""s_lshl_b32 s46, s35, 10
        s_add_u32 s46, s46, {FB}
        v_and_b32 v12, 7, v2
        v_lshl_add_u32 v12, v12, 7, s46
        s_mov_b32 s47, 0
        s_mov_b32 s51, 1""")
        g.flag_wait(12,47,51,4,slp=2)
        k(f"""s_lshl_b32 s46, s35, 5
        s_add_u32 s46, s46, s{sW}
        s_mul_i32 s46, s46, 6144
        s_add_u32 s46, s46, {KVP}""")
        for hf in range(2):
            for p in range(4):
                k("s_add_u32 s47, s46, 4096")
                for i in range(6): k(f"buffer_load_dwordx4 {v(32+(p*6+i)*4,4)}, v3, {srd(WS)}, s{46 if i<4 else 47} offen offset:{(i&3)*1024} sc1")
                k(f"s_add_u32 s46, s46, {4*6144}")
            k("s_waitcnt vmcnt(0)")
            for i in range(6):
                for q in range(4):
                    D=kva(i//2,i%2)+q; S=32+4*i+q
                    if hf==0: k(f"v_add_f32 v{D}, v{S}, v{S+24}")
                    else: k(f"v_add_f32 v{D}, v{D}, v{S}\nv_add_f32 v{D}, v{D}, v{S+24}")
                    k(f"v_add_f32 v{D}, v{D}, v{S+48}\nv_add_f32 v{D}, v{D}, v{S+72}")
        k(f"""s_mul_i32 s46, s{sW}, 1920
        s_add_u32 s46, s46, {KVT}
        v_and_b32 v12, 15, v2
        v_mul_u32_u24 v13, 80, v12
        v_lshrrev_b32 v14, 4, v2
        v_lshl_add_u32 v13, v14, 3, v13
        v_add_u32 v13, s46, v13
        s_mov_b32 s54, 0x001f001f
        s_mov_b32 s55, 0x001f001f""")
        for T in range(3):
            for N in range(2):
                D=kva(T,N)
                k(f"v_cvt_pk_bf16_f32 v{D}, v{D}, v{D+1}\nv_cvt_pk_bf16_f32 v{D+1}, v{D+2}, v{D+3}")
                k("s_mov_b64 exec, s[54:55]" if N else "s_mov_b64 exec, -1")
                if T==2: k("s_mov_b32 exec_hi, 0")
                k(f"ds_write_b64 v13, {v(D,2)} offset:{N*16*80+T*32}\ns_mov_b64 exec, -1")
        k(f"""s_waitcnt lgkmcnt(0)
        s_barrier
        v_mul_u32_u24 v13, 1920, v14
        v_and_b32 v15, 3, v2
        v_mul_u32_u24 v15, 80, v15
        v_add_u32 v13, v13, v15
        v_add_u32 v13, {KVT}, v13
        v_bfe_u32 v15, v2, 2, 2
        v_cmp_eq_u32 s[56:57], v14, v15""")
        for t in range(6):
            for ks in range(5):
                k(f"""v_add_u32 v14, {t*320+ks*16}, v13
                v_mov_b32 v15, {ZR}
                v_cndmask_b32 v14, v15, v14, s[56:57]
                ds_read_b128 {r(XA+(t*5+ks)*4,4)}, v14""")
            k("s_waitcnt lgkmcnt(0)")
        k(f"s_mul_i32 s46, s35, 160\ns_add_u32 s46, s46, s45\ns_add_u32 s46, s46, {OB}\ns_mov_b32 s47, {f2u(1e-6)}")
        for tl in range(4):
            A=ACC+24*(tl&1)
            for ks in range(5):
                for t in range(6):
                    D=v(A+4*t,4)
                    k(f"v_mfma_f32_16x16x32_bf16 {D}, {r(XA+(t*5+ks)*4,4)}, {v(PQ+20*tl+4*ks,4)}, {'0' if ks==0 else D}")
            k(f"v_add_f32 v{A+20}, s47, v{A+20}\nv_rcp_f32 v{A+20}, v{A+20}")
            for j in range(20): k(f"v_mul_f32 v{A+j}, v{A+j}, v{A+20}")
            P=T0-20+10*(tl&1)
            for j in range(10): k(f"v_cvt_pk_bf16_f32 v{P+j}, v{A+2*j}, v{A+2*j+1}")
            k(f"s_add_u32 s51, s46, {((tl>>1)*128+(tl&1)*16)*1280}")
            for j in range(5): k(f"buffer_store_dwordx2 {v(P+2*j,2)}, v20, {srd(WS)}, s51 offen offset:{8*j} sc1")
        l=k.new("BF")
        k(f"""s_waitcnt vmcnt(0)
        s_barrier
        s_lshl_b32 s51, s2, 7
        s_add_u32 s51, s51, {FB+64*128}
        s_mov_b32 s46, 1
        s_cmp_lg_u32 s{sW}, 0
        s_cbranch_scc1 {l}""")
        g.flag_set(46,51,4,5)
        k.label(l)
        k(f"""s_lshl_b32 s46, s36, 10
        s_add_u32 s46, s46, {FB+64*128}
        v_and_b32 v12, 7, v2
        v_lshl_add_u32 v12, v12, 7, s46
        s_mov_b32 s47, 0
        s_mov_b32 s51, 1""")
        g.flag_wait(12,47,51,4,slp=2)
        xload(WS,OB,"sc1")
        k("s_branch B_NEXT")
        k.label("B_OUT")
        l=k.new("BO")
        k(f"s_cmp_lg_u32 s{sS}, 6\ns_cbranch_scc1 {l}")
        xload(WS,OB+128*1280,"sc1")
        k.label(l)
        k(f"""s_sub_u32 s46, s{sS}, 6
        s_mul_i32 s46, s46, {128*2560}
        s_lshl_b32 s47, s45, 1
        s_add_u32 s46, s46, s47
        s_mul_i32 s47, s35, 160
        s_add_u32 s46, s46, s47
        s_add_u32 s46, s46, 1280""")
        for tt in range(2):
            P=FA+10*tt
            for j in range(10): k(f"v_cvt_pk_bf16_f32 v{P+j}, v{ACC+20*tt+2*j}, v{ACC+20*tt+2*j+1}")
            for j in range(5): k(f"buffer_store_dwordx2 {v(P+2*j,2)}, v21, {srd(OUT)}, s46 offen offset:{8*j}")
            k(f"s_add_u32 s46, s46, {16*2560}")
        k(f"s_cmp_eq_u32 s{sS}, 6\ns_cbranch_scc1 B_NEXT\ns_waitcnt vmcnt(0)")
        g.logdump(6)
        k("s_endpgm")
    def prologue(g):
        k=g.k
        k.raw("; @launch grid=(256,1,1) block=(256,1,1) lds=163840")
        k.raw('.amdgcn_target "amdgcn-amd-amdhsa--gfx950"\n.text\n.globl %s_kernel\n.p2align 8\n.type %s_kernel,@function'%(NAME,NAME))
        k.label(NAME+"_kernel")
        k(f"""s_cmp_ge_u32 s2, 256
        s_cbranch_scc1 EXIT0
        s_load_dwordx4 s[4:7], s[0:1], 96""")
        if g.log: k("s_memrealtime s[80:81]")
        k(f"""v_lshrrev_b32 v1, 6, v0
        v_and_b32 v2, 63, v0
        v_readfirstlane_b32 s{sW}, v1
        s_mov_b32 s{sBUD}, 1000000
        s_waitcnt lgkmcnt(0)""")
        g.mk_srd(WS,6,0x10000000); g.mk_srd(DBG,4,256)
        k(f"""s_bfe_u32 s3, s2, 0x10002
        s_lshr_b32 s4, s2, 3
        s_lshl_b32 s4, s4, 2
        s_and_b32 s2, s2, 3
        s_or_b32 s2, s2, s4
        s_lshl_b32 s{sID}, s3, 7
        s_or_b32 s{sID}, s{sID}, s2
        s_cmp_eq_u32 s3, 0
        s_cbranch_scc1 CHAIN_HALF""")
        def disp(role,n):
            l=k.new("DS")
            k(f"s_cmp_ge_u32 s2, {n}\ns_cbranch_scc1 {l}")
            k(f"s_branch ROLE_{role}" if role in g.roles+"T" else "s_endpgm")
            k.label(l); k(f"s_sub_u32 s2, s2, {n}")
        disp("P",96); disp("O",20)
        k("s_add_u32 s2, s2, 20")
        k("s_branch ROLE_W" if "W" in g.roles else "s_endpgm")
        k.label("CHAIN_HALF")
        disp("A",32); disp("U",32); disp("R",40); disp("T",3); disp("W",20)
        k.label("EXIT0")
        k("s_endpgm")
    def build(g):
        g.prologue()
        for ro in "ARTO":
            if ro in g.roles+"T": g.k.raw(".p2align 6"); getattr(g,"role_"+ro)()
        g.k.label("EXIT"); g.k("s_endpgm")
        for ro in "UWPB":
            if ro in g.roles: g.k.raw(".p2align 6"); getattr(g,"role_"+ro)()
        n=g.k.fix()
        t=g.k.text()
        t+=f""".section .rodata,"a"
.p2align 6
.amdhsa_kernel {NAME}_kernel
  .amdhsa_next_free_vgpr 512
  .amdhsa_next_free_sgpr 102
  .amdhsa_accum_offset 256
  .amdhsa_group_segment_fixed_size 0
  .amdhsa_kernarg_size 112
  .amdhsa_user_sgpr_count 2
  .amdhsa_user_sgpr_kernarg_segment_ptr 1
  .amdhsa_system_sgpr_workgroup_id_x 1
.end_amdhsa_kernel
"""
        return t
if __name__=="__main__":
    out=sys.argv[1] if len(sys.argv)>1 else "x.s"
    opts=eval(sys.argv[2]) if len(sys.argv)>2 else {}
    open(out,"w").write(G(**opts).build())
```
